```python
import torch

def _softmax(x, axis=-1):
    return torch.softmax(x, dim=axis)
def _gelu(x):
    return torch.nn.functional.gelu(x, approximate="tanh")
def _silu(x):
    return torch.nn.functional.silu(x)
def _sigmoid(x):
    return torch.sigmoid(x)
def _layernorm(x, axis=-1, eps=1e-5):
    m = x.mean(dim=axis, keepdim=True)
    v = x.var(dim=axis, keepdim=True, unbiased=False)
    return (x - m) / torch.sqrt(v + eps)
def _scatter_add(tgt, idx, src, axis=0):
    return tgt.clone().index_add_(axis, idx, src)
def _segment_sum(src, seg, n):
    out = torch.zeros((n,) + src.shape[1:], dtype=src.dtype)
    return out.index_add_(0, seg, src)
def _pad(x, pw):
    flat = tuple(v for pair in reversed(pw) for v in pair)
    return torch.nn.functional.pad(x, flat)

kernel_name = 'standalone__layernorm_linear__sampling'

def setup_inputs():

    _w = (lambda a: (lambda t: t.to(torch.bfloat16) if t.is_floating_point() else t)(torch.as_tensor(a)))
    B, S, D = 1024, 4, 1024
    return {
        "x": _w((lambda *s: torch.randn(*s, dtype=torch.bfloat16) * 0.05)(B, S, D)),
        "g": _w((lambda *s: torch.randn(*s, dtype=torch.bfloat16) * 0.05)(D) + 1.0),
        "b": _w((lambda *s: torch.randn(*s, dtype=torch.bfloat16) * 0.4)(D)),
        "w": _w((lambda *s: torch.randn(*s, dtype=torch.bfloat16) * 0.05)(D, D)),
    }

def reference(x, g, b, w):
    return (_layernorm(x, axis=-1) * g + b) @ w
```

```python
import sys

NAME = "standalone__layernorm_linear__sampling_kernel"
HDR = open('standalone__layernorm_linear__sampling.s.ref').read().split('; Override launch')[0]

NSLOT = 5
B_BASE = 0
A_BASE = NSLOT * 16384
GB_BASE = A_BASE + 65536
LDS_BYTES = GB_BASE + 4096
X_BASE = 0
ST_BASE = A_BASE
S_BASE = A_BASE + 4096

V_TID = 0
V_OFFA0, V_OFFA1, V_OFFB = 1, 2, 3
V_ARD = 4
V_BRD = 8
V_BRD2 = 12
V_GBRD = 16
V_PIV = 17
V_SU0, V_SU1, V_SQ0, V_SQ1 = 18, 19, 20, 21
V_LANE = 22
V_TMPX = 23
V_G = 24
V_RAW = 40
V_VF = 72
V_T = 80
V_E = 96
NV = 128
A_ACC = 0
A_SACC = 64
A_BF = 80
A_GB = 112
NA = 120

class G:
    def __init__(self):
        self.l = []
        self.nvm = 0
    def e(self, s):
        self.l.append("    " + s)
    def lab(self, s):
        self.l.append(s + ":")
    def c(self, s):
        self.l.append("    ; " + s)
    def vm(self, s):
        self.e(s); self.nvm += 1
        return self.nvm
    def wait_vm(self, idx, extra=""):
        n = self.nvm - idx
        assert 0 <= n <= 63
        self.e(f"s_waitcnt vmcnt({n}){extra}")

def gen(stats_inloop=True):
    g = G()
    e = g.e
    e("s_cmp_ge_u32 s2, 256")
    e("s_cbranch_scc1 L_end")
    e("s_load_dwordx8 s[4:11], s[0:1], 0")
    e("s_load_dwordx2 s[12:13], s[0:1], 32")
    e("s_and_b32 s46, s2, 7")
    e("s_lshr_b32 s47, s2, 3")
    e("s_lshr_b32 s48, s47, 3")
    e("s_lshl_b32 s36, s46, 2")
    e("s_add_u32 s36, s36, s48")
    e("s_and_b32 s37, s47, 7")
    e("s_lshl_b32 s38, s48, 1")
    e("s_add_u32 s38, s38, s37")
    e("s_and_b32 s38, s38, 7")
    e(f"v_lshrrev_b32 v{V_TMPX}, 6, v0")
    e(f"v_and_b32 v{V_LANE}, 63, v0")
    e(f"v_readfirstlane_b32 s39, v{V_TMPX}")
    e("s_nop 3")
    e("s_and_b32 s40, s39, 3")
    e("s_lshr_b32 s41, s39, 2")
    e("s_lshl_b32 s49, s41, 1")
    e("s_add_u32 s49, s49, s40")
    e("s_and_b32 s49, s49, 3")
    e("s_lshl_b32 s42, s36, 18")
    e("s_lshl_b32 s46, s40, 16")
    e("s_add_u32 s42, s42, s46")
    e("s_lshl_b32 s46, s41, 10")
    e("s_add_u32 s42, s42, s46")
    e("s_lshl_b32 s43, s37, 8")
    e("s_lshl_b32 s46, s41, 20")
    e("s_add_u32 s43, s43, s46")
    e("s_lshl_b32 s46, s40, 14")
    e("s_add_u32 s43, s43, s46")
    e("s_lshl_b32 s44, s39, 13")
    e(f"s_add_u32 s44, s44, {A_BASE}")
    e("s_lshl_b32 s45, s41, 13")
    e("s_lshl_b32 s46, s40, 11")
    e("s_add_u32 s45, s45, s46")
    for c in range(8):
        e(f"s_add_u32 s46, s38, {c}")
        e("s_and_b32 s46, s46, 7")
        e("s_lshl_b32 s47, s46, 7")
        e(f"s_add_u32 s{52+c}, s42, s47")
        e("s_lshl_b32 s48, s41, 10")
        e(f"s_add_u32 s{68+c}, s48, s47")
        e("s_lshl_b32 s47, s46, 17")
        e(f"s_add_u32 s{60+c}, s43, s47")
    L = V_LANE
    T = V_T
    e(f"v_lshrrev_b32 v{T}, 3, v{L}")
    e(f"v_lshlrev_b32 v{T}, 11, v{T}")
    e(f"v_and_b32 v{T+1}, 7, v{L}")
    e(f"v_lshrrev_b32 v{T+2}, 4, v{L}")
    e(f"v_xor_b32 v{T+1}, v{T+1}, v{T+2}")
    e(f"v_lshl_add_u32 v{V_OFFA0}, v{T+1}, 4, v{T}")
    e(f"v_xor_b32 v{V_OFFA1}, 64, v{V_OFFA0}")
    e(f"v_lshlrev_b32 v{T}, 11, v{T+2}")
    e(f"v_and_b32 v{T+1}, 15, v{L}")
    e(f"v_lshlrev_b32 v{T+3}, 2, v{T+2}")
    e(f"v_xor_b32 v{T+1}, v{T+1}, v{T+3}")
    e(f"v_lshl_add_u32 v{V_OFFB}, v{T+1}, 4, v{T}")
    e("s_waitcnt lgkmcnt(0)")
    def srd(d, b, n):
        e(f"s_mov_b32 s{d}, s{b}")
        e(f"s_and_b32 s{d+1}, s{b+1}, 0xffff")
        e(f"s_mov_b32 s{d+2}, {n}")
        e(f"s_mov_b32 s{d+3}, 0x00020000")
    srd(16, 4, 8388608)
    srd(20, 10, 2097152)
    srd(24, 6, 2048)
    srd(28, 8, 2048)
    srd(32, 12, 8388608)

    ids = {}
    def dmaA(c):
        slot = c & 1
        for q in range(4):
            e(f"s_add_u32 m0, s44, {slot*4096 + q*1024}")
            e(f"s_add_u32 s46, s{52+c}, {8*q*2048}")
            vo = V_OFFA0 if q % 2 == 0 else V_OFFA1
            ids[('A', c)] = g.vm(f"buffer_load_dwordx4 v{vo}, s[16:19], s46 offen lds")
    def dmaB(p):
        c, half = p >> 1, p & 1
        slot = p % NSLOT
        for q in range(2):
            e(f"s_add_u32 m0, s45, {B_BASE + slot*16384 + q*1024}")
            e(f"s_add_u32 s46, s{60+c}, {(half*32 + 4*q)*2048}")
            ids[('B', p)] = g.vm(f"buffer_load_dwordx4 v{V_OFFB}, s[20:23], s46 offen lds")

    dmaA(0)
    dmaB(0)
    e(f"v_lshrrev_b32 v{T}, 3, v{L}")
    e(f"v_add_u32 v{T}, s38, v{T}")
    e(f"v_and_b32 v{T}, 7, v{T}")
    e(f"v_lshlrev_b32 v{T}, 7, v{T}")
    e(f"v_and_b32 v{T+1}, 7, v{L}")
    e(f"v_lshl_add_u32 v{T}, v{T+1}, 4, v{T}")
    e("s_and_b32 s46, s39, 1")
    e("s_lshl_b32 s46, s46, 10")
    e("s_and_b32 s47, s39, 3")
    e("s_lshl_b32 s47, s47, 10")
    e(f"s_add_u32 m0, s47, {GB_BASE}")
    e("s_bitcmp1_b32 s39, 1")
    e("s_cbranch_scc1 L_gb_b")
    e(f"buffer_load_dwordx4 v{T}, s[24:27], s46 offen lds")
    e("s_branch L_gb_done")
    g.lab("L_gb_b")
    e(f"buffer_load_dwordx4 v{T}, s[28:31], s46 offen lds")
    g.lab("L_gb_done")
    g.nvm += 1
    ids['GB'] = g.nvm
    e(f"v_bfe_u32 v{T+2}, v{L}, 3, 1")
    e(f"v_lshlrev_b32 v{T+2}, 5, v{T+2}")
    e(f"v_lshrrev_b32 v{T+3}, 5, v{L}")
    e(f"v_lshl_add_u32 v{T+2}, v{T+3}, 4, v{T+2}")
    e(f"v_and_b32 v{T+3}, 7, v{L}")
    e(f"v_lshl_add_u32 v{T+2}, v{T+3}, 1, v{T+2}")
    for k in range(16):
        ids['G'] = g.vm(f"buffer_load_ushort v{V_G+k}, v{T+2}, s[24:27], s{68+(k>>1)} offen offset:{64*(k&1)}")
    dmaB(1)
    dmaA(1)
    dmaB(2); dmaB(3); dmaB(4)

    e(f"v_and_b32 v{T}, 31, v{L}")
    e(f"v_lshrrev_b32 v{T+1}, 5, v{L}")
    e(f"v_bfe_u32 v{T+2}, v{L}, 1, 3")
    e(f"v_xor_b32 v{T+2}, v{T+2}, v{T+1}")
    e(f"v_lshlrev_b32 v{T+3}, 7, v{T}")
    e(f"v_lshl_add_u32 v{T+3}, v{T+2}, 4, v{T+3}")
    e(f"v_add_u32 v{V_ARD}, s44, v{T+3}")
    for s in range(1, 4):
        e(f"v_xor_b32 v{V_ARD+s}, {32*s}, v{V_ARD}")
    e(f"v_and_b32 v{T+2}, 1, v{L}")
    e(f"v_lshlrev_b32 v{T+2}, 11, v{T+2}")
    e(f"v_lshl_add_u32 v{T+2}, v{T+1}, 4, v{T+2}")
    e("s_lshl_b32 s46, s41, 10")
    e(f"s_add_u32 s46, s46, {GB_BASE}")
    e(f"v_add_u32 v{V_GBRD}, s46, v{T+2}")
    e(f"v_bfe_u32 v{T+2}, v{L}, 2, 2")
    e(f"v_lshl_add_u32 v{T+3}, v{T+1}, 3, v{T+2}")
    e(f"v_lshlrev_b32 v{T+3}, 8, v{T+3}")
    e(f"v_bfe_u32 v{T+4}, v{L}, 4, 1")
    e(f"v_lshl_add_u32 v{T+3}, v{T+4}, 5, v{T+3}")
    e(f"v_and_b32 v{T+4}, 3, v{L}")
    e(f"v_lshl_add_u32 v{T+3}, v{T+4}, 3, v{T+3}")
    e("s_lshl_b32 s46, s41, 13")
    e(f"v_add_u32 v{T+3}, s46, v{T+3}")
    for k in range(4):
        e(f"s_add_u32 s46, s49, {k}")
        e("s_and_b32 s46, s46, 3")
        e(f"v_xor_b32 v{T+4}, s46, v{T+2}")
        e(f"v_lshl_add_u32 v{V_BRD+k}, v{T+4}, 6, v{T+3}")
        e(f"v_add_u32 v{V_BRD2+k}, 0x10000, v{V_BRD+k}")
    for r in range(80):
        e(f"v_accvgpr_write_b32 a{r}, 0")
    for r in (V_SU0, V_SU1, V_SQ0, V_SQ1):
        e(f"v_mov_b32 v{r}, 0")

    def readA(c):
        for s in range(4):
            r = V_RAW + (c & 1) * 16 + 4 * s
            e(f"ds_read_b128 v[{r}:{r+3}], v{V_ARD+s} offset:{(c&1)*4096}")

    g.wait_vm(ids[('A', 0)])
    readA(0)
    e(f"v_mov_b32 v{T}, 0x3f803f80")
    e(f"v_mov_b32 v{T+1}, 0")
    e(f"v_mov_b32 v{T+2}, 0")
    e("s_waitcnt lgkmcnt(0)")
    for r in range(16):
        e(f"v_dot2_f32_bf16 v{T+1+(r&1)}, v{V_RAW+r}, v{T}, v{T+1+(r&1)}")
    dmaA(2)
    e("s_nop 2")
    e(f"v_add_f32 v{T+1}, v{T+1}, v{T+2}")
    e(f"v_mov_b32 v{T+2}, v{T+1}")
    e("s_nop 1")
    e(f"v_permlane32_swap_b32 v{T+2}, v{T+1}")
    e("s_nop 1")
    e(f"v_add_f32 v{T+1}, v{T+1}, v{T+2}")
    e(f"v_mul_f32 v{V_PIV}, 0x3c800000, v{T+1}")
    g.wait_vm(ids['G'])
    for k in range(16):
        e(f"v_lshlrev_b32 v{V_G+k}, 16, v{V_G+k}")
    e("s_nop 1")

    def norm_ops(t):
        c, s = t >> 2, t & 3
        raw = V_RAW + (c & 1) * 16 + 4 * s
        vf = V_VF + (t & 1) * 4
        greg = V_G + (t >> 1)
        groups = []
        for p in range(4):
            t0 = T + 2 * p
            o = []
            o.append(f"v_lshlrev_b32 v{t0}, 16, v{raw+p}")
            o.append(f"v_and_b32 v{t0+1}, 0xffff0000, v{raw+p}")
            o.append(f"v_sub_f32 v{t0}, v{t0}, v{V_PIV}")
            o.append(f"v_sub_f32 v{t0+1}, v{t0+1}, v{V_PIV}")
            if stats_inloop:
                o.append(f"v_add_f32 v{V_SU0}, v{V_SU0}, v{t0}")
                o.append(f"v_add_f32 v{V_SU1}, v{V_SU1}, v{t0+1}")
                o.append(f"v_fmac_f32 v{V_SQ0}, v{t0}, v{t0}")
                o.append(f"v_fmac_f32 v{V_SQ1}, v{t0+1}, v{t0+1}")
            n0 = (t & 1) * 8 + 2 * p
            o.append(f"v_mul_f32_dpp v{t0}, v{greg}, v{t0} row_newbcast:{n0} row_mask:0xf bank_mask:0xf")
            o.append(f"v_mul_f32_dpp v{t0+1}, v{greg}, v{t0+1} row_newbcast:{n0+1} row_mask:0xf bank_mask:0xf")
            o.append(f"v_cvt_pk_bf16_f32 v{vf+p}, v{t0}, v{t0+1}")
            groups.append(o)
        return groups

    def readB(t):
        p, s2 = t >> 1, t & 1
        slot = p % NSLOT
        buf = A_BF + (t & 1) * 16
        for k in range(4):
            for h in range(2):
                if slot < 4:
                    e(f"ds_read_b64_tr_b16 a[{buf+4*k+2*h}:{buf+4*k+2*h+1}], v{V_BRD+k} offset:{slot*16384 + s2*4096 + h*1024}")
                else:
                    e(f"ds_read_b64_tr_b16 a[{buf+4*k+2*h}:{buf+4*k+2*h+1}], v{V_BRD2+k} offset:{s2*4096 + h*1024}")
        gb = A_GB + (t & 1) * 4
        e(f"ds_read_b128 a[{gb}:{gb+3}], v{V_GBRD} offset:{t*32}")

    for t in range(-1, 32):
        g.c(f"---- step {t}")
        lg = " lgkmcnt(0)" if t >= 0 else ""
        if t % 2 != 0:
            p = (t + 1) // 2
            need = []
            if p <= 15: need.append(ids[('B', p)])
            if p == 0: need.append(ids['GB'])
            if (t + 3) % 4 == 0 and 1 <= (t + 3) // 4 <= 7: need.append(ids[('A', (t + 3) // 4)])
            if need:
                g.wait_vm(max(need), lg)
            elif lg:
                e("s_waitcnt lgkmcnt(0)")
            if p <= 15:
                e("s_barrier")
            if p >= 1 and p + 4 <= 15:
                dmaB(p + 4)
        else:
            e("s_waitcnt lgkmcnt(0)")
            if (t + 2) % 4 == 0:
                c = (t + 2) // 4
                if c >= 1 and c + 2 <= 7:
                    dmaA(c + 2)
        groups = norm_ops(t + 1) if t + 1 <= 31 else [[], [], [], []]
        buf = A_BF + (t & 1) * 16
        vf = V_VF + (t & 1) * 4
        def mfma(k):
            if t >= 0:
                e(f"v_mfma_f32_32x32x16_bf16 a[{16*k}:{16*k+15}], a[{buf+4*k}:{buf+4*k+3}], v[{vf}:{vf+3}], a[{16*k}:{16*k+15}]")
        mfma(0)
        if t + 1 <= 31:
            readB(t + 1)
        if (t + 3) % 4 == 0 and 1 <= (t + 3) // 4 <= 7:
            readA((t + 3) // 4)
        for o in groups[0]: e(o)
        mfma(1)
        for o in groups[1]: e(o)
        mfma(2)
        for o in groups[2]: e(o)
        mfma(3)
        for o in groups[3]: e(o)
        if t < 0: e("s_nop 1")
        if t >= 0:
            gb = A_GB + (t & 1) * 4
            e(f"v_mfma_f32_32x32x16_bf16 a[{A_SACC}:{A_SACC+15}], a[{buf}:{buf+3}], a[{gb}:{gb+3}], a[{A_SACC}:{A_SACC+15}]")

    g.c("---- epilogue")
    E = V_E
    e(f"v_add_f32 v{V_SU0}, v{V_SU0}, v{V_SU1}")
    e(f"v_add_f32 v{V_SQ0}, v{V_SQ0}, v{V_SQ1}")
    e(f"v_mov_b32 v{T}, v{V_SU0}")
    e(f"v_mov_b32 v{T+1}, v{V_SQ0}")
    e("s_nop 1")
    e(f"v_permlane32_swap_b32 v{T}, v{V_SU0}")
    e(f"v_permlane32_swap_b32 v{T+1}, v{V_SQ0}")
    e("s_nop 1")
    e(f"v_add_f32 v{T}, v{T}, v{V_SU0}")
    e(f"v_add_f32 v{T+1}, v{T+1}, v{V_SQ0}")
    e(f"v_mov_b32 v{T+2}, v{V_PIV}")
    e(f"v_mov_b32 v{T+3}, 0")
    e("s_barrier")
    e(f"v_and_b32 v{T+4}, 31, v{L}")
    e("s_lshl_b32 s46, s40, 5")
    e(f"v_add_u32 v{T+4}, s46, v{T+4}")
    e(f"v_lshlrev_b32 v{T+5}, 4, v{T+4}")
    e(f"v_add_u32 v{T+5}, {ST_BASE}, v{T+5}")
    e("s_lshl_b32 s46, s41, 11")
    e(f"v_add_u32 v{T+6}, s46, v{T+5}")
    e(f"ds_write_b128 v{T+6}, v[{T}:{T+3}]")
    e(f"v_lshlrev_b32 v{T+7}, 4, v{L}")
    e("s_lshl_b32 s46, s39, 13")
    e(f"v_add_u32 v{T+8}, s46, v{T+7}")
    e("s_xor_b32 s46, s46, 0x8000")
    e(f"v_add_u32 v{T+9}, s46, v{T+7}")
    e("s_nop 7")
    e("s_nop 7")
    for q in range(8):
        e(f"ds_write_b128 v{T+8}, a[{32+4*q}:{35+4*q}] offset:{q*1024}")
    e(f"v_and_b32 v{T+10}, 31, v{L}")
    e(f"v_lshlrev_b32 v{T+11}, 9, v{T+10}")
    e(f"v_lshrrev_b32 v{T+12}, 5, v{L}")
    e(f"v_lshl_add_u32 v{T+11}, v{T+12}, 4, v{T+11}")
    e("s_lshl_b32 s46, s41, 10")
    e("s_lshl_b32 s47, s49, 7")
    e("s_add_u32 s46, s46, s47")
    e(f"s_add_u32 s46, s46, {S_BASE}")
    e(f"v_add_u32 v{T+11}, s46, v{T+11}")
    e(f"v_cmp_gt_u32 vcc, 2, v{T+10}")
    e("s_and_saveexec_b64 s[50:51], vcc")
    for q in range(4):
        e(f"ds_write_b128 v{T+11}, a[{A_SACC+4*q}:{A_SACC+3+4*q}] offset:{q*32}")
    e("s_mov_b64 exec, s[50:51]")
    e("s_waitcnt lgkmcnt(0)")
    e("s_barrier")
    e(f"ds_read_b128 v[{E}:{E+3}], v{T+5}")
    e(f"ds_read_b128 v[{E+4}:{E+7}], v{T+5} offset:2048")
    for q in range(8):
        e(f"ds_read_b128 v[{V_RAW+4*q}:{V_RAW+3+4*q}], v{T+9} offset:{q*1024}")
    e("s_waitcnt lgkmcnt(8)")
    su0, sq0, p0, su1, sq1, p1 = E, E+1, E+2, E+4, E+5, E+6
    mean, d0, d1, m2, t1, t2 = E+8, E+9, E+10, E+11, E+12, E+13
    rr, c0, c1 = E+14, E+15, E+16
    e(f"v_add_f32 v{t1}, v{p0}, v{p1}")
    e(f"v_add_f32 v{t2}, v{su0}, v{su1}")
    e(f"v_mul_f32 v{t1}, 0.5, v{t1}")
    e(f"v_mov_b32 v{mean}, 0x3a800000")
    e(f"v_fma_f32 v{mean}, v{t2}, v{mean}, v{t1}")
    e(f"v_sub_f32 v{d0}, v{mean}, v{p0}")
    e(f"v_sub_f32 v{d1}, v{mean}, v{p1}")
    e(f"v_add_f32 v{m2}, v{sq0}, v{sq1}")
    e(f"v_mul_f32 v{t1}, 0x44000000, v{d0}")
    e(f"v_fma_f32 v{t1}, v{su0}, -2.0, v{t1}")
    e(f"v_fmac_f32 v{m2}, v{d0}, v{t1}")
    e(f"v_mul_f32 v{t2}, 0x44000000, v{d1}")
    e(f"v_fma_f32 v{t2}, v{su1}, -2.0, v{t2}")
    e(f"v_fmac_f32 v{m2}, v{d1}, v{t2}")
    e(f"v_mul_f32 v{m2}, 0x3a800000, v{m2}")
    e(f"v_max_f32 v{m2}, 0, v{m2}")
    e(f"v_cvt_pk_bf16_f32 v{t1}, v{mean}, v{m2}")
    e(f"v_lshlrev_b32 v{mean}, 16, v{t1}")
    e(f"v_and_b32 v{m2}, 0xffff0000, v{t1}")
    e(f"v_add_f32 v{m2}, 0x3727c5ac, v{m2}")
    e(f"v_cvt_pk_bf16_f32 v{t1}, v{m2}, v{m2}")
    e(f"v_lshlrev_b32 v{m2}, 16, v{t1}")
    e(f"v_sqrt_f32 v{m2}, v{m2}")
    e("s_nop 0")
    e(f"v_cvt_pk_bf16_f32 v{t1}, v{m2}, v{m2}")
    e(f"v_lshlrev_b32 v{m2}, 16, v{t1}")
    e(f"v_rcp_f32 v{rr}, v{m2}")
    e(f"v_sub_f32 v{c0}, v{p0}, v{mean}")
    e(f"v_sub_f32 v{c1}, v{p1}, v{mean}")
    e(f"v_mul_f32 v{c0}, v{c0}, v{rr}")
    e(f"v_mul_f32 v{c1}, v{c1}, v{rr}")
    e(f"v_lshlrev_b32 v{T+4}, 11, v{T+4}")
    e(f"v_lshl_add_u32 v{T+4}, v{T+12}, 4, v{T+4}")
    e(f"v_lshlrev_b32 v{T+13}, 4, v{T+12}")
    e(f"v_add_u32 v{T+13}, {S_BASE}, v{T+13}")
    S = E + 18
    S = V_G
    O = V_VF
    for k in range(2):
        e(f"s_add_u32 s46, s49, {k}")
        e("s_and_b32 s46, s46, 3")
        e("s_lshl_b32 s47, s46, 7")
        e(f"v_add_u32 v{T+14}, s47, v{T+13}")
        e("s_lshl_b32 s47, s36, 18")
        e("s_lshl_b32 s48, s37, 8")
        e("s_add_u32 s47, s47, s48")
        e("s_lshl_b32 s48, s46, 6")
        e(f"s_add_u32 s{76+k}, s47, s48")
        for q in range(4):
            for a in range(4):
                e(f"ds_read_b128 v[{S+4*a}:{S+4*a+3}], v{T+14} offset:{a*512 + q*32}")
            for j in range(4):
                e(f"v_accvgpr_read_b32 v{T+j}, a{16*k+4*q+j}")
            e("s_waitcnt lgkmcnt(0)")
            for j in range(4):
                e(f"v_add_f32 v{T+j}, v{T+j}, v{V_RAW+16*k+4*q+j}")
                e(f"v_add_f32 v{S+4+j}, v{S+4+j}, v{S+12+j}")
                e(f"v_fmac_f32 v{S+4+j}, v{c0}, v{S+j}")
                e(f"v_fmac_f32 v{S+4+j}, v{c1}, v{S+8+j}")
                e(f"v_fmac_f32 v{S+4+j}, v{rr}, v{T+j}")
            oo = O + (q & 1) * 2 + (q >> 1) * 4
            e(f"v_cvt_pk_bf16_f32 v{oo}, v{S+4}, v{S+5}")
            e(f"v_cvt_pk_bf16_f32 v{oo+1}, v{S+6}, v{S+7}")
            if q & 1:
                o4 = O + (q >> 1) * 4
                e("s_nop 1")
                e(f"v_permlane32_swap_b32 v{o4}, v{o4+2}")
                e(f"v_permlane32_swap_b32 v{o4+1}, v{o4+3}")
                e("s_nop 1")
                e(f"buffer_store_dwordx4 v[{o4}:{o4+3}], v{T+4}, s[32:35], s{76+k} offen offset:{(q>>1)*32}")
        e("s_nop 1")
    g.lab("L_end")
    e("s_endpgm")

    out = HDR
    out += "; Override launch geometry by editing the next line.\n"
    out += f"; @launch grid=(256,1,1) block=(512,1,1) lds={LDS_BYTES}\n"
    out += '.amdgcn_target "amdgcn-amd-amdhsa--gfx950"\n.text\n'
    out += f".globl {NAME}\n.p2align 8\n.type {NAME},@function\n{NAME}:\n"
    out += "\n".join(g.l) + "\n"
    out += f""".section .rodata,"a"
.p2align 6
.amdhsa_kernel {NAME}
  .amdhsa_next_free_vgpr {NV+NA}
  .amdhsa_next_free_sgpr 96
  .amdhsa_accum_offset {NV}
  .amdhsa_group_segment_fixed_size 0
  .amdhsa_kernarg_size 56
  .amdhsa_user_sgpr_count 2
  .amdhsa_user_sgpr_kernarg_segment_ptr 1
  .amdhsa_system_sgpr_workgroup_id_x 1
.end_amdhsa_kernel
"""
    return out

if __name__ == '__main__':
    open(sys.argv[1], 'w').write(gen())
```

```python
import sys

NAME = "standalone__layernorm_linear__sampling_kernel"
HDR = open('standalone__layernorm_linear__sampling.s.ref').read().split('; Override launch')[0]

A_BASE = 98304
LDS_BYTES = 163840
ROWP = A_BASE
SARR = A_BASE + 2048
WS_ST = 0
WS_S = 1 << 20
WS_BYTES = 2 << 20

NV, NA = 72, 96
V_LANE, V_PIV, V_GOFF = 1, 2, 3
V_ARD, V_BRD, V_BRD2, V_G, V_RAW, V_VF, V_T, V_X = 4, 8, 12, 16, 20, 40, 48, 64
A_BF = 64

class G:
    def __init__(self):
        self.l = []; self.nvm = 0
    def e(self, s): self.l.append("    " + s)
    def lab(self, s): self.l.append(s + ":")
    def c(self, s): self.l.append("    ; " + s)
    def vm(self, s):
        self.e(s); self.nvm += 1; return self.nvm
    def wait_vm(self, idx, extra=""):
        n = self.nvm - idx
        assert 0 <= n <= 63, n
        self.e(f"s_waitcnt vmcnt({n}){extra}")

def gen(stamps=0, force_fb=0, prio=0):
    g = G(); e = g.e
    nst = [0]
    def stamp():
        if stamps:
            e(f"s_{'memtime' if stamps==2 else 'memrealtime'} s[{80+2*nst[0]}:{81+2*nst[0]}]"); nst[0] += 1
    def srd(d, b, n):
        e(f"s_mov_b32 s{d}, s{b}")
        e(f"s_and_b32 s{d+1}, s{b+1}, 0xffff")
        e(f"s_mov_b32 s{d+2}, {n}")
        e(f"s_mov_b32 s{d+3}, 0x00020000")
    L = V_LANE; T = V_T
    e("s_cmp_ge_u32 s2, 256")
    e("s_cbranch_scc1 L_end")
    stamp()
    e("s_load_dwordx8 s[4:11], s[0:1], 0")
    e("s_load_dwordx4 s[12:15], s[0:1], 32")
    e("s_load_dwordx2 s[56:57], s[0:1], 48")
    e(f"v_lshrrev_b32 v{T}, 6, v0")
    e(f"v_and_b32 v{L}, 63, v0")
    e(f"v_readfirstlane_b32 s39, v{T}")
    e("s_and_b32 s46, s2, 7")
    e("s_lshr_b32 s47, s2, 3")
    e("s_lshr_b32 s48, s47, 3")
    e("s_lshl_b32 s36, s46, 2")
    e("s_add_u32 s36, s36, s48")
    e("s_and_b32 s37, s47, 7")
    e("s_lshl_b32 s38, s48, 1")
    e("s_add_u32 s38, s38, s37")
    e("s_and_b32 s48, s46, 1")
    e("s_add_u32 s38, s38, s48")
    e("s_and_b32 s38, s38, 7")
    e("s_lshr_b32 s58, s46, 1")
    e("s_lshl_b32 s58, s58, 3")
    e("s_add_u32 s58, s58, s37")
    e("s_cmp_ge_u32 s39, 8")
    e("s_cbranch_scc1 L_loader")

    e("s_and_b32 s40, s39, 3")
    e("s_lshr_b32 s41, s39, 2")
    e("s_lshl_b32 s44, s39, 13")
    e(f"s_add_u32 s44, s44, {A_BASE}")
    e(f"v_bfe_u32 v{T+2}, v{L}, 3, 1")
    e(f"v_lshlrev_b32 v{T+2}, 5, v{T+2}")
    e(f"v_lshrrev_b32 v{T+1}, 5, v{L}")
    e(f"v_lshl_add_u32 v{T+2}, v{T+1}, 4, v{T+2}")
    e(f"v_and_b32 v{T+3}, 7, v{L}")
    e(f"v_lshl_add_u32 v{V_GOFF}, v{T+3}, 1, v{T+2}")
    for k in range(4):
        e(f"v_mov_b32 v{V_G+k}, 0")
    e("s_lshl_b32 s45, s41, 10")
    e("s_waitcnt lgkmcnt(0)")
    srd(24, 6, 2048)
    def loadG(c):
        e(f"s_add_u32 s46, s38, {c}")
        e("s_and_b32 s46, s46, 7")
        e("s_lshl_b32 s46, s46, 7")
        e("s_add_u32 s46, s46, s45")
        for k in range(2):
            g.vm(f"buffer_load_short_d16_hi v{V_G+2*(c&1)+k}, v{V_GOFF}, s[24:27], s46 offen offset:{64*k}")
    loadG(0); loadG(1)
    srd(32, 12, 8388608)
    srd(28, 56, WS_BYTES)
    e(f"v_and_b32 v{T}, 31, v{L}")
    e(f"v_bfe_u32 v{T+2}, v{L}, 1, 3")
    e(f"v_xor_b32 v{T+2}, v{T+2}, v{T+1}")
    e(f"v_lshlrev_b32 v{T+3}, 7, v{T}")
    e(f"v_lshl_add_u32 v{T+3}, v{T+2}, 4, v{T+3}")
    e(f"v_add_u32 v{V_ARD}, s44, v{T+3}")
    for s in range(1, 4):
        e(f"v_xor_b32 v{V_ARD+s}, {32*s}, v{V_ARD}")
    e(f"v_bfe_u32 v{T+2}, v{L}, 2, 2")
    e(f"v_lshl_add_u32 v{T+3}, v{T+1}, 3, v{T+2}")
    e(f"v_lshlrev_b32 v{T+3}, 8, v{T+3}")
    e(f"v_bfe_u32 v{T+4}, v{L}, 4, 1")
    e(f"v_lshl_add_u32 v{T+3}, v{T+4}, 5, v{T+3}")
    e(f"v_and_b32 v{T+4}, 3, v{L}")
    e(f"v_lshl_add_u32 v{T+3}, v{T+4}, 3, v{T+3}")
    e("s_lshl_b32 s46, s41, 14")
    e(f"v_add_u32 v{T+3}, s46, v{T+3}")
    e("s_lshl_b32 s49, s41, 1")
    for k in range(4):
        e(f"s_xor_b32 s46, s49, {k}")
        e(f"v_xor_b32 v{T+4}, s46, v{T+2}")
        e(f"v_lshl_add_u32 v{V_BRD+k}, v{T+4}, 6, v{T+3}")
        e(f"v_add_u32 v{V_BRD2+k}, 0x10000, v{V_BRD+k}")
    for r in range(64):
        e(f"v_accvgpr_write_b32 a{r}, 0")
    e(f"v_lshlrev_b32 v{V_X}, 3, v{T}")
    e("s_lshl_b32 s46, s36, 14")
    e("s_lshl_b32 s47, s41, 3")
    e("s_add_u32 s47, s47, s38")
    e("s_lshl_b32 s47, s47, 10")
    e("s_add_u32 s46, s46, s47")
    e("s_lshl_b32 s47, s40, 8")
    e("s_add_u32 s59, s46, s47")
    e(f"v_mov_b32 v{T+8}, 0x3f803f80")
    for k in range(4):
        e(f"v_mov_b32 v{T+9+k}, 0")

    rs = lambda t: V_RAW + 4 * (t % 5)
    def readA1(t):
        c, s = t >> 2, t & 3
        e(f"ds_read_b128 v[{rs(t)}:{rs(t)+3}], v{V_ARD+s} offset:{(c&1)*4096}")

    e("s_barrier")
    stamp()
    for t in range(4): readA1(t)
    e("s_waitcnt lgkmcnt(0)")
    for r in range(16):
        e(f"v_dot2_f32_bf16 v{T+9+(r&1)}, v{V_RAW+r}, v{T+8}, v{T+9+(r&1)}")
        e(f"v_dot2_f32_bf16 v{T+11+(r&1)}, v{V_RAW+r}, v{V_RAW+r}, v{T+11+(r&1)}")
    e("s_nop 2")
    e(f"v_add_f32 v{T+9}, v{T+9}, v{T+10}")
    e(f"v_add_f32 v{T+10}, v{T+11}, v{T+12}")
    e(f"v_mov_b32 v{T+11}, v{T+9}")
    e(f"v_mov_b32 v{T+12}, v{T+10}")
    e("s_nop 1")
    e(f"v_permlane32_swap_b32 v{T+11}, v{T+9}")
    e(f"v_permlane32_swap_b32 v{T+12}, v{T+10}")
    e("s_nop 1")
    e(f"v_add_f32 v{V_X+2}, v{T+9}, v{T+11}")
    e(f"v_add_f32 v{V_X+3}, v{T+10}, v{T+12}")
    e(f"v_mul_f32 v{V_PIV}, 0x3c800000, v{V_X+2}")
    e("s_mov_b32 exec_hi, 0")
    g.vm(f"buffer_store_dwordx2 v[{V_X+2}:{V_X+3}], v{V_X}, s[28:31], s59 offen sc0 sc1")
    e("s_mov_b64 exec, -1")
    e("s_waitcnt vmcnt(1)")

    def norm_ops(t):
        c = t >> 2
        raw = rs(t)
        vf = V_VF + (t & 1) * 4
        greg = V_G + 2 * (c & 1) + ((t >> 1) & 1)
        groups = []
        for pp in range(2):
            o = []
            ps = (2 * pp, 2 * pp + 1)
            for p in ps:
                t0 = T + 2 * p
                o.append(f"v_lshlrev_b32 v{t0}, 16, v{raw+p}")
                o.append(f"v_and_b32 v{t0+1}, 0xffff0000, v{raw+p}")
            for p in ps:
                t0 = T + 2 * p
                o.append(f"v_sub_f32 v{t0}, v{t0}, v{V_PIV}")
                o.append(f"v_sub_f32 v{t0+1}, v{t0+1}, v{V_PIV}")
            for p in ps:
                t0 = T + 2 * p
                n0 = (t & 1) * 8 + 2 * p
                o.append(f"v_mul_f32_dpp v{t0}, v{greg}, v{t0} row_newbcast:{n0} row_mask:0xf bank_mask:0xf")
                o.append(f"v_mul_f32_dpp v{t0+1}, v{greg}, v{t0+1} row_newbcast:{n0+1} row_mask:0xf bank_mask:0xf")
            for p in ps:
                t0 = T + 2 * p
                o.append(f"v_cvt_pk_bf16_f32 v{vf+p}, v{t0}, v{t0+1}")
            groups.append(o[:7]); groups.append(o[7:])
        return groups

    def readB(t):
        c, s = t >> 2, t & 3
        slot = c % 3
        buf = A_BF + (t & 1) * 16
        for k in range(4):
            for h in range(2):
                if slot < 2:
                    e(f"ds_read_b64_tr_b16 a[{buf+4*k+2*h}:{buf+4*k+2*h+1}], v{V_BRD+k} offset:{slot*32768 + s*4096 + h*1024}")
                else:
                    e(f"ds_read_b64_tr_b16 a[{buf+4*k+2*h}:{buf+4*k+2*h+1}], v{V_BRD2+k} offset:{s*4096 + h*1024}")

    if prio == 1:
        e("s_cmp_ge_u32 s39, 4"); e("s_cbranch_scc0 L_noprio"); e("s_setprio 1"); g.lab("L_noprio")
    for t in range(-1, 32):
        g.c(f"---- step {t}")
        if (t + 1) % 4 == 0 and t + 1 <= 31:
            j = (t + 1) // 4
            if t >= 0:
                e("s_waitcnt vmcnt(0) lgkmcnt(0)")
            e("s_barrier")
            if 1 <= j <= 6: loadG_next = j + 1
            else: loadG_next = None
        else:
            e("s_waitcnt lgkmcnt(0)")
            loadG_next = None
        if t in (-1, 7, 15, 23): stamp()
        groups = norm_ops(t + 1) if t + 1 <= 31 else [[], [], [], []]
        buf = A_BF + (t & 1) * 16
        vf = V_VF + (t & 1) * 4
        def mfma(k):
            if t >= 0:
                e(f"v_mfma_f32_32x32x16_bf16 a[{16*k}:{16*k+15}], a[{buf+4*k}:{buf+4*k+3}], v[{vf}:{vf+3}], a[{16*k}:{16*k+15}]")
        mfma(0)
        if t + 1 <= 31: readB(t + 1)
        if t + 5 <= 31: readA1(t + 5)
        for o in groups[0]: e(o)
        mfma(1)
        for o in groups[1]: e(o)
        mfma(2)
        for o in groups[2]: e(o)
        mfma(3)
        for o in groups[3]: e(o)
        if loadG_next is not None: loadG(loadG_next)
        if t < 0: e("s_nop 1")

    g.c("---- epilogue")
    stamp()
    e(f"v_lshlrev_b32 v{T+7}, 4, v{L}")
    e("s_lshl_b32 s46, s40, 13")
    e("s_lshl_b32 s47, s41, 16")
    e("s_add_u32 s46, s46, s47")
    e(f"v_add_u32 v{T+8}, s46, v{T+7}")
    e("s_xor_b32 s46, s46, 0x10000")
    e(f"v_add_u32 v{T+9}, s46, v{T+7}")
    e(f"v_and_b32 v{T+4}, 31, v{L}")
    e(f"v_lshrrev_b32 v{T+6}, 5, v{L}")
    e("s_nop 4")
    for q in range(8):
        e(f"ds_write_b128 v{T+8}, a[{32+4*q}:{35+4*q}] offset:{q*1024}")
    e("s_lshl_b32 s46, s40, 9")
    e(f"s_add_u32 s46, s46, {ROWP}")
    e(f"v_lshl_add_u32 v{T+5}, v{T+4}, 4, s46")
    e(f"v_lshl_add_u32 v{T+10}, v{T+6}, 2, v{T+5}")
    e("s_lshl_b32 s46, s41, 8")
    e(f"s_add_u32 s46, s46, {SARR}")
    e(f"v_lshl_add_u32 v{T+11}, v{T+4}, 2, s46")
    e(f"v_lshl_add_u32 v{T+11}, v{T+6}, 9, v{T+11}")
    e(f"v_and_b32 v{T+12}, 7, v{T+4}")
    e(f"v_xor_b32 v{T+12}, v{T+12}, v{T+6}")
    e(f"v_lshlrev_b32 v{T+12}, 4, v{T+12}")
    e(f"v_lshl_add_u32 v{T+12}, v{T+4}, 7, v{T+12}")
    e("s_add_u32 s46, s44, 4096")
    e(f"v_add_u32 v{T+12}, s46, v{T+12}")
    e(f"v_lshrrev_b32 v{T+13}, 3, v{L}")
    e(f"v_and_b32 v{T+14}, 7, v{L}")
    e(f"v_xor_b32 v{T+15}, v{T+14}, v{T+13}")
    e(f"v_lshlrev_b32 v{T+15}, 4, v{T+15}")
    e(f"v_lshl_add_u32 v{T+15}, v{T+13}, 7, v{T+15}")
    e(f"v_add_u32 v{T+15}, s46, v{T+15}")
    e(f"v_lshlrev_b32 v{T+14}, 4, v{T+14}")
    e(f"v_lshl_add_u32 v{T+13}, v{T+13}, 11, v{T+14}")
    e("s_lshl_b32 s47, s36, 18")
    e("s_lshl_b32 s48, s37, 8")
    e("s_add_u32 s47, s47, s48")
    e("s_lshl_b32 s48, s41, 7")
    e("s_add_u32 s47, s47, s48")
    e("s_lshl_b32 s48, s40, 16")
    e("s_add_u32 s47, s47, s48")
    e("s_waitcnt lgkmcnt(0)")
    e("s_barrier")
    P = 16
    CC, SS, RRr = V_X, V_X+2, V_X+3
    SV = V_X + 4
    e(f"ds_read_b32 v{CC}, v{T+10}")
    e(f"ds_read_b64 v[{SS}:{SS+1}], v{T+5} offset:8")
    for k in range(2):
        e(f"ds_read_b32 v{SV+2*k}, v{T+11} offset:{k*128}")
        e(f"ds_read_b32 v{SV+2*k+1}, v{T+11} offset:{k*128+1024}")
    for q in range(8):
        e(f"ds_read_b128 v[{P+4*q}:{P+3+4*q}], v{T+9} offset:{q*1024}")
    e("s_waitcnt lgkmcnt(8)")
    for k in range(2):
        e(f"v_mfma_f32_32x32x2_f32 a[{16*k}:{16*k+15}], v{SV+2*k}, v{CC}, a[{16*k}:{16*k+15}]")
    for k in range(2):
        e(f"v_mfma_f32_32x32x2_f32 a[{16*k}:{16*k+15}], v{SV+2*k+1}, v{SS}, a[{16*k}:{16*k+15}]")
    e("s_nop 15")
    e("s_nop 3")
    e("s_waitcnt lgkmcnt(0)")
    O = 4
    U = T
    for k in range(2):
        for q in range(4):
            for j in range(4):
                e(f"v_accvgpr_read_b32 v{U+j}, a{16*k+4*q+j}")
            for j in range(4):
                e(f"v_add_f32 v{U+j}, v{U+j}, v{P+16*k+4*q+j}")
            for j in range(4):
                e(f"v_mul_f32 v{U+j}, v{U+j}, v{RRr}")
            oo = O + (q & 1) * 2 + (q >> 1) * 4
            e(f"v_cvt_pk_bf16_f32 v{oo}, v{U}, v{U+1}")
            e(f"v_cvt_pk_bf16_f32 v{oo+1}, v{U+2}, v{U+3}")
            if q & 1:
                o4 = O + (q >> 1) * 4
                e(f"v_xor_b32 v12, {(4*k + 2*(q>>1))*16}, v{T+12}")
                e("s_nop 0")
                e(f"v_permlane32_swap_b32 v{o4}, v{o4+2}")
                e(f"v_permlane32_swap_b32 v{o4+1}, v{o4+3}")
                e("s_nop 1")
                e(f"ds_write_b128 v12, v[{o4}:{o4+3}]")
    e("s_waitcnt lgkmcnt(0)")
    for it in range(4):
        e(f"ds_read_b128 v[{P+4*it}:{P+3+4*it}], v{T+15} offset:{it*1024}")
    for it in range(4):
        e(f"s_waitcnt lgkmcnt({3-it})")
        if it: e(f"s_add_u32 s47, s47, {8*2048}")
        e(f"buffer_store_dwordx4 v[{P+4*it}:{P+3+4*it}], v{T+13}, s[32:35], s47 offen")
    if stamps:
        e("s_waitcnt vmcnt(0)")
        stamp()
        e("s_waitcnt lgkmcnt(0)")
        e("s_mov_b32 s30, 0x1000000")
        e("s_lshl_b32 s46, s2, 3")
        e("s_add_u32 s46, s46, s39")
        e("s_lshl_b32 s46, s46, 6")
        e("s_add_u32 s46, s46, 0x400000")
        e("v_mov_b32 v2, s46")
        for k in range(16):
            e(f"v_mov_b32 v{4+k}, s{80+k}")
        e(f"v_cmp_eq_u32 vcc, 0, v{L}")
        e("s_and_saveexec_b64 s[50:51], vcc")
        for k in range(4):
            e(f"buffer_store_dwordx4 v[{4+4*k}:{7+4*k}], v2, s[28:31], 0 offen offset:{16*k}")
        e("s_waitcnt vmcnt(0)")
    e("s_endpgm")

    g.lab("L_loader")
    g.nvm = 0
    OA0, OA1, OB = 2, 3, 4
    e("s_sub_u32 s40, s39, 8")
    e("s_lshr_b32 s41, s40, 1")
    e("s_and_b32 s42, s40, 1")
    e(f"v_lshrrev_b32 v{T}, 3, v{L}")
    e(f"v_lshlrev_b32 v{T}, 11, v{T}")
    e(f"v_and_b32 v{T+1}, 7, v{L}")
    e(f"v_lshrrev_b32 v{T+2}, 4, v{L}")
    e(f"v_xor_b32 v{T+1}, v{T+1}, v{T+2}")
    e(f"v_lshl_add_u32 v{OA0}, v{T+1}, 4, v{T}")
    e(f"v_xor_b32 v{OA1}, 64, v{OA0}")
    e(f"v_lshlrev_b32 v{T}, 11, v{T+2}")
    e(f"v_and_b32 v{T+1}, 15, v{L}")
    e(f"v_lshlrev_b32 v{T+3}, 2, v{T+2}")
    e(f"v_xor_b32 v{T+1}, v{T+1}, v{T+3}")
    e(f"v_lshl_add_u32 v{OB}, v{T+1}, 4, v{T}")
    e("s_lshl_b32 s43, s36, 18")
    e("s_lshl_b32 s46, s42, 17")
    e("s_add_u32 s43, s43, s46")
    e("s_lshl_b32 s46, s41, 10")
    e("s_add_u32 s43, s43, s46")
    e("s_lshl_b32 s44, s40, 14")
    e(f"s_add_u32 s44, s44, {A_BASE}")
    e("s_lshl_b32 s45, s37, 8")
    e("s_lshl_b32 s46, s41, 20")
    e("s_add_u32 s45, s45, s46")
    e("s_lshl_b32 s46, s42, 16")
    e("s_add_u32 s45, s45, s46")
    e("s_lshl_b32 s49, s40, 13")
    e("s_waitcnt lgkmcnt(0)")
    srd(16, 4, 8388608)
    srd(20, 10, 2097152)
    ids = {}
    def dmaA(c):
        e(f"s_add_u32 s47, s38, {c}")
        e("s_and_b32 s47, s47, 7")
        e("s_lshl_b32 s47, s47, 7")
        e("s_add_u32 s47, s47, s43")
        for u in range(2):
            for q in range(4):
                e(f"s_add_u32 m0, s44, {u*8192 + (c&1)*4096 + q*1024}")
                e(f"s_add_u32 s46, s47, {(32*u + 8*q)*2048}")
                ids[('A', c)] = g.vm(f"buffer_load_dwordx4 v{OA0 if q%2==0 else OA1}, s[16:19], s46 offen lds")
    def dmaB(c):
        e(f"s_add_u32 s47, s38, {c}")
        e("s_and_b32 s47, s47, 7")
        e("s_lshl_b32 s47, s47, 17")
        e("s_add_u32 s47, s47, s45")
        for q in range(8):
            e(f"s_add_u32 m0, s49, {(c%3)*32768 + q*1024}")
            e(f"s_add_u32 s46, s47, {4*q*2048}")
            ids[('B', c)] = g.vm(f"buffer_load_dwordx4 v{OB}, s[20:23], s46 offen lds")
    dmaA(0); dmaB(0); dmaA(1); dmaB(1); dmaB(2)
    srd(24, 6, 2048)
    srd(28, 8, 2048)
    srd(32, 56, WS_BYTES)
    srd(60, 14, 256)
    GBF = 16
    e(f"v_lshrrev_b32 v{T}, 5, v{L}")
    e(f"v_lshlrev_b32 v{T}, 4, v{T}")
    e("s_lshl_b32 s46, s41, 10")
    e("s_lshl_b32 s47, s38, 7")
    e("s_add_u32 s46, s46, s47")
    e("s_mov_b32 s50, 0x55555555")
    e("s_mov_b32 s51, 0x55555555")
    e("s_mov_b64 exec, s[50:51]")
    for s in range(4):
        g.vm(f"buffer_load_dwordx4 v[{GBF+4*s}:{GBF+4*s+3}], v{T}, s[24:27], s46 offen offset:{32*s}")
    e("s_not_b64 exec, exec")
    for s in range(4):
        ids['GB'] = g.vm(f"buffer_load_dwordx4 v[{GBF+4*s}:{GBF+4*s+3}], v{T}, s[28:31], s46 offen offset:{32*s}")
    e("s_mov_b64 exec, -1")
    BR = 5
    e(f"v_lshrrev_b32 v{T+1}, 5, v{L}")
    e(f"v_bfe_u32 v{T+2}, v{L}, 2, 2")
    e(f"v_lshl_add_u32 v{T+3}, v{T+1}, 3, v{T+2}")
    e(f"v_lshlrev_b32 v{T+3}, 8, v{T+3}")
    e(f"v_bfe_u32 v{T+4}, v{L}, 4, 1")
    e(f"v_lshl_add_u32 v{T+3}, v{T+4}, 5, v{T+3}")
    e(f"v_and_b32 v{T+4}, 3, v{L}")
    e(f"v_lshl_add_u32 v{T+3}, v{T+4}, 3, v{T+3}")
    e("s_lshl_b32 s46, s41, 14")
    e(f"v_add_u32 v{T+3}, s46, v{T+3}")
    for k in range(2):
        e("s_lshl_b32 s46, s42, 1")
        e(f"s_add_u32 s46, s46, {k}")
        e(f"v_xor_b32 v{T+4}, s46, v{T+2}")
        e(f"v_lshl_add_u32 v{BR+k}, v{T+4}, 6, v{T+3}")
    for r in range(32):
        e(f"v_accvgpr_write_b32 a{r}, 0")
    e(f"v_and_b32 v{T+5}, 31, v{L}")
    e(f"v_lshlrev_b32 v7, 10, v{T+5}")
    e(f"v_lshl_add_u32 v7, v{T+1}, 4, v7")
    e("s_lshl_b32 s46, s58, 14")
    e("s_lshl_b32 s47, s38, 11")
    e("s_add_u32 s46, s46, s47")
    e("s_lshl_b32 s47, s41, 9")
    e("s_add_u32 s46, s46, s47")
    e("s_lshl_b32 s47, s42, 8")
    e("s_add_u32 s46, s46, s47")
    e(f"s_add_u32 s59, s46, {WS_S}")
    g.wait_vm(ids[('A', 0)])
    e("s_barrier")
    g.wait_vm(ids[('A', 1)])
    e("s_barrier")
    dmaA(2)
    for s in range(4):
        for k in range(2):
            for h in range(2):
                r = 32 + 16 * s + 8 * 0 + 4 * k + 2 * h
                e(f"ds_read_b64_tr_b16 a[{32+8*s+4*k+2*h}:{33+8*s+4*k+2*h}], v{BR+k} offset:{s*4096 + h*1024}")
    g.wait_vm(ids['GB'], " lgkmcnt(0)")
    for s in range(4):
        for k in range(2):
            e(f"v_mfma_f32_32x32x16_bf16 a[{16*k}:{16*k+15}], a[{32+8*s+4*k}:{35+8*s+4*k}], v[{GBF+4*s}:{GBF+4*s+3}], a[{16*k}:{16*k+15}]")
    e("s_nop 7"); e("s_nop 7")
    e(f"v_cmp_gt_u32 vcc, 2, v{T+5}")
    e("s_and_saveexec_b64 s[50:51], vcc")
    for k in range(2):
        for q in range(4):
            g.vm(f"buffer_store_dwordx4 a[{16*k+4*q}:{16*k+4*q+3}], v7, s[32:35], s59 offen offset:{k*128+q*32} sc0 sc1")
    e("s_mov_b64 exec, -1")
    IDX = 8
    S1, S2, SA, SB, PV, PA, PL = 9, 10, 11, 12, 13, 14, 15
    RR, CH = 64, 65
    e("s_lshl_b32 s46, s40, 6")
    e(f"v_add_u32 v{IDX}, s46, v{L}")
    e("s_lshr_b32 s46, s36, 3")
    e("s_lshl_b32 s46, s46, 6")
    e(f"v_lshl_add_u32 v{PA}, v{L}, 2, s46")
    e("s_mov_b32 s54, 0x01010101")
    def poll_issue():
        e("s_mov_b64 exec, 0xffff")
        e(f"buffer_load_dword v{PL}, v{PA}, s[60:63], 0 offen sc0 sc1")
        e("s_mov_b64 exec, -1")
    def poll_check():
        e("s_mov_b64 exec, 0xffff")
        e(f"v_cmp_ne_u32 vcc, s54, v{PL}")
        e("s_mov_b64 exec, -1")
    def pivot_load():
        e(f"v_lshrrev_b32 v{T}, 1, v{IDX}")
        e(f"v_lshlrev_b32 v{T}, 3, v{T}")
        e(f"v_and_b32 v{T+1}, 1, v{IDX}")
        e(f"v_lshl_add_u32 v{T}, v{T+1}, 13, v{T}")
        e("s_lshl_b32 s46, s36, 14")
        e("s_lshl_b32 s47, s38, 10")
        e("s_add_u32 s47, s46, s47")
        e(f"buffer_load_dword v{PV}, v{T}, s[32:35], s47 offen sc0 sc1")
    def gather_issue():
        pivot_load()
        for c in range(8):
            if c % 4 == 0 and c: e("s_add_u32 s46, s46, 4096")
            e(f"buffer_load_dwordx2 v[{16+2*c}:{17+2*c}], v{T}, s[32:35], s46 offen offset:{(c%4)*1024} sc0 sc1")
        e(f"v_lshlrev_b32 v{T+2}, 2, v{IDX}")
        e("s_lshl_b32 s47, s58, 14")
        e(f"s_add_u32 s47, s47, {WS_S}")
        for c in range(8):
            if c % 2 == 0 and c: e("s_add_u32 s47, s47, 4096")
            e(f"buffer_load_dword v{32+2*c}, v{T+2}, s[32:35], s47 offen offset:{(c%2)*2048} sc0 sc1")
            e(f"buffer_load_dword v{33+2*c}, v{T+2}, s[32:35], s47 offen offset:{(c%2)*2048+1024} sc0 sc1")
    def gather_sum():
        e(f"v_add_f32 v{S1}, v16, v18"); e(f"v_add_f32 v{S2}, v17, v19")
        for c in range(2, 8):
            e(f"v_add_f32 v{S1}, v{S1}, v{16+2*c}"); e(f"v_add_f32 v{S2}, v{S2}, v{17+2*c}")
        e(f"v_add_f32 v{SA}, v32, v34"); e(f"v_add_f32 v{SB}, v33, v35")
        for c in range(2, 8):
            e(f"v_add_f32 v{SA}, v{SA}, v{32+2*c}"); e(f"v_add_f32 v{SB}, v{SB}, v{33+2*c}")
    def final_math():
        e("s_nop 1")
        e(f"v_add_f32_dpp v{T+5}, v{S1}, v{S1} quad_perm:[1,0,3,2] row_mask:0xf bank_mask:0xf")
        e(f"v_add_f32_dpp v{T+6}, v{S2}, v{S2} quad_perm:[1,0,3,2] row_mask:0xf bank_mask:0xf")
        mean, var, t1 = T+5, T+6, T+7
        e(f"v_mul_f32 v{mean}, 0x3a800000, v{mean}")
        e(f"v_mul_f32 v{var}, 0x3a800000, v{var}")
        e(f"v_fma_f32 v{var}, -v{mean}, v{mean}, v{var}")
        e(f"v_max_f32 v{var}, 0, v{var}")
        e(f"v_cvt_pk_bf16_f32 v{t1}, v{mean}, v{var}")
        e(f"v_lshlrev_b32 v{mean}, 16, v{t1}")
        e(f"v_and_b32 v{var}, 0xffff0000, v{t1}")
        e(f"v_add_f32 v{var}, 0x3727c5ac, v{var}")
        e(f"v_cvt_pk_bf16_f32 v{t1}, v{var}, v{var}")
        e(f"v_lshlrev_b32 v{var}, 16, v{t1}")
        e(f"v_sqrt_f32 v{var}, v{var}")
        e("s_nop 0")
        e(f"v_cvt_pk_bf16_f32 v{t1}, v{var}, v{var}")
        e(f"v_lshlrev_b32 v{var}, 16, v{t1}")
        e(f"v_rcp_f32 v{RR+3}, v{var}")
        e(f"v_mov_b32 v{RR+2}, v{var}")
        e(f"v_mul_f32 v{CH}, 0x3c800000, v{PV}")
        e(f"v_sub_f32 v{CH}, v{CH}, v{mean}")
    def params_write():
        e(f"v_lshlrev_b32 v{T+2}, 2, v{IDX}")
        e(f"v_add_u32 v{T+2}, {SARR}, v{T+2}")
        e(f"ds_write_b32 v{T+2}, v{SA}")
        e(f"ds_write_b32 v{T+2}, v{SB} offset:1024")
        e(f"v_lshrrev_b32 v{T}, 1, v{IDX}")
        e(f"v_lshlrev_b32 v{T}, 4, v{T}")
        e(f"v_add_u32 v{T}, {ROWP}, v{T}")
        e(f"v_and_b32 v{T+1}, 1, v{IDX}")
        e(f"v_lshl_add_u32 v{T+1}, v{T+1}, 2, v{T}")
        e(f"ds_write_b64 v{T}, v[{RR+2}:{RR+3}] offset:8")
        e(f"ds_write_b32 v{T+1}, v{CH}")
    e("s_mov_b32 s53, 0")
    for j in range(1, 8):
        need = [ids[('B', j)]]
        if j + 1 <= 7: need.append(ids[('A', j + 1)])
        if j == 6: e("s_waitcnt vmcnt(0)")
        elif j < 6: g.wait_vm(max(need))
        e("s_barrier")
        if j + 2 <= 7:
            dmaA(j + 2); dmaB(j + 2)
        if j == 2:
            e("s_cmp_lg_u32 s40, 0")
            e("s_cbranch_scc1 L_noflag")
            e("s_lshl_b32 s46, s36, 3")
            e("s_add_u32 s46, s46, s37")
            e(f"v_mov_b32 v{T}, s46")
            e(f"v_mov_b32 v{T+1}, 1")
            e("s_mov_b64 exec, 1")
            e(f"buffer_store_byte v{T+1}, v{T}, s[60:63], 0 offen sc0 sc1")
            e("s_mov_b64 exec, -1")
            g.lab("L_noflag")
        if j == 5 and not force_fb:
            poll_issue()
        if j == 6 and not force_fb:
            poll_check()
            e("s_cbranch_vccnz L_early_no")
            e("s_mov_b32 s53, 1")
            gather_issue()
            g.lab("L_early_no")
    e("s_cmp_lg_u32 s53, 0")
    e("s_cbranch_scc1 L_gdone")
    e(f"s_mov_b32 s52, {0 if force_fb==1 else 40000}")
    g.lab("L_poll")
    poll_issue()
    e("s_waitcnt vmcnt(0)")
    poll_check()
    if force_fb != 1:
        e("s_cbranch_vccz L_gather")
    e("s_cmp_eq_u32 s52, 0")
    e("s_cbranch_scc1 L_fallback")
    e("s_sub_u32 s52, s52, 1")
    e("s_sleep 2")
    e("s_branch L_poll")
    g.lab("L_gather")
    gather_issue()
    g.lab("L_gdone")
    e("s_waitcnt vmcnt(0)")
    gather_sum()
    g.lab("L_final")
    final_math()
    params_write()
    e("s_waitcnt lgkmcnt(0)")
    e("s_barrier")
    e("s_endpgm")

    g.lab("L_fallback")
    pivot_load()
    e(f"v_lshrrev_b32 v{T}, 1, v{IDX}")
    e(f"v_lshlrev_b32 v{T}, 11, v{T}")
    e(f"v_and_b32 v{T+1}, 1, v{IDX}")
    e(f"v_lshl_add_u32 v{T}, v{T+1}, 10, v{T}")
    e("s_lshl_b32 s46, s36, 18")
    e(f"v_mov_b32 v{S1}, 0"); e(f"v_mov_b32 v{S2}, 0"); e(f"v_mov_b32 v{SA}, 0"); e(f"v_mov_b32 v{SB}, 0")
    e(f"v_mov_b32 v{T+8}, 0x3f803f80")
    e("s_mov_b32 s52, 64")
    g.lab("L_fb1")
    e(f"buffer_load_dwordx4 v[16:19], v{T}, s[16:19], s46 offen")
    e("s_waitcnt vmcnt(0)")
    for r in range(4):
        e(f"v_dot2_f32_bf16 v{S1}, v{16+r}, v{T+8}, v{S1}")
        e(f"v_dot2_f32_bf16 v{S2}, v{16+r}, v{16+r}, v{S2}")
    e("s_add_u32 s46, s46, 16")
    e("s_sub_u32 s52, s52, 1")
    e("s_cmp_lg_u32 s52, 0")
    e("s_cbranch_scc1 L_fb1")
    e(f"v_lshrrev_b32 v{T+1}, 7, v{IDX}")
    e(f"v_and_b32 v{T}, 127, v{IDX}")
    e(f"v_lshlrev_b32 v{T}, 1, v{T}")
    e(f"v_lshl_add_u32 v{T}, v{T+1}, 20, v{T}")
    e(f"v_lshlrev_b32 v{T+1}, 10, v{T+1}")
    e("s_lshl_b32 s46, s37, 8")
    e("s_mov_b32 s47, 0")
    e("s_mov_b32 s52, 512")
    g.lab("L_fb2")
    e(f"buffer_load_ushort v16, v{T}, s[20:23], s46 offen")
    e(f"buffer_load_ushort v17, v{T+1}, s[24:27], s47 offen")
    e(f"buffer_load_ushort v18, v{T+1}, s[28:31], s47 offen")
    e("s_waitcnt vmcnt(0)")
    e("v_lshlrev_b32 v16, 16, v16"); e("v_lshlrev_b32 v17, 16, v17"); e("v_lshlrev_b32 v18, 16, v18")
    e(f"v_fmac_f32 v{SA}, v16, v17")
    e(f"v_fmac_f32 v{SB}, v16, v18")
    e("s_add_u32 s46, s46, 2048")
    e("s_add_u32 s47, s47, 2")
    e("s_sub_u32 s52, s52, 1")
    e("s_cmp_lg_u32 s52, 0")
    e("s_cbranch_scc1 L_fb2")
    e("s_branch L_final")
    g.lab("L_end")
    e("s_endpgm")

    out = HDR
    out += "; Override launch geometry by editing the next line.\n"
    out += f"; @launch grid=(256,1,1) block=(768,1,1) lds={LDS_BYTES}\n"
    out += '.amdgcn_target "amdgcn-amd-amdhsa--gfx950"\n.text\n'
    out += f".globl {NAME}\n.p2align 8\n.type {NAME},@function\n{NAME}:\n"
    out += "\n".join(x for x in g.l if x is not None) + "\n"
    out += f""".section .rodata,"a"
.p2align 6
.amdhsa_kernel {NAME}
  .amdhsa_next_free_vgpr {NV+NA}
  .amdhsa_next_free_sgpr 96
  .amdhsa_accum_offset {NV}
  .amdhsa_group_segment_fixed_size 0
  .amdhsa_kernarg_size 56
  .amdhsa_user_sgpr_count 2
  .amdhsa_user_sgpr_kernarg_segment_ptr 1
  .amdhsa_system_sgpr_workgroup_id_x 1
.end_amdhsa_kernel
"""
    return out

if __name__ == '__main__':
    kw = {}
    for a in sys.argv[2:]:
        k, v = a.split('='); kw[k] = int(v)
    open(sys.argv[1], 'w').write(gen(**kw))
```

```python
import sys

NAME = "standalone__layernorm_linear__sampling_kernel"
HDR = open('standalone__layernorm_linear__sampling.s.ref').read().split('; Override launch')[0]

A_BASE = 98304
LDS_BYTES = 163840
ROWP = A_BASE
SARR = A_BASE + 2048
PIVX = A_BASE + 8192
WS_S = 1 << 20
WS_BYTES = 2 << 20

NV, NA = 104, 64
V_LANE, V_PIV, V_GOFF = 1, 2, 3
V_ARD, V_BRD, V_BRD2, V_G, V_RAW, V_VF, V_T, V_X, V_ACC = 4, 8, 12, 16, 20, 40, 48, 64, 72
A_BF = 32

class G:
    def __init__(self):
        self.l = []; self.nvm = 0
    def e(self, s): self.l.append("    " + s)
    def lab(self, s): self.l.append(s + ":")
    def c(self, s): self.l.append("    ; " + s)
    def vm(self, s):
        self.e(s); self.nvm += 1; return self.nvm
    def wait_vm(self, idx, extra=""):
        n = self.nvm - idx
        assert 0 <= n <= 63, n
        self.e(f"s_waitcnt vmcnt({n}){extra}")

def gen(stamps=0, force_fb=0, sch=3, pk=1, early=1):
    g = G(); e = g.e
    nst = [0]
    def stamp():
        if stamps:
            e(f"s_{'memtime' if stamps==2 else 'memrealtime'} s[{80+2*nst[0]}:{81+2*nst[0]}]"); nst[0] += 1
    def srd(d, b, n):
        e(f"s_mov_b32 s{d}, s{b}")
        e(f"s_and_b32 s{d+1}, s{b+1}, 0xffff")
        e(f"s_mov_b32 s{d+2}, {n}")
        e(f"s_mov_b32 s{d+3}, 0x00020000")
    L = V_LANE; T = V_T
    e("s_cmp_ge_u32 s2, 256")
    e("s_cbranch_scc1 L_end")
    stamp()
    e("s_load_dwordx8 s[4:11], s[0:1], 0")
    e("s_load_dwordx4 s[12:15], s[0:1], 32")
    e("s_load_dwordx2 s[56:57], s[0:1], 48")
    e(f"v_lshrrev_b32 v{T}, 6, v0")
    e(f"v_and_b32 v{L}, 63, v0")
    e(f"v_readfirstlane_b32 s39, v{T}")
    e("s_and_b32 s46, s2, 7")
    e("s_lshr_b32 s47, s2, 3")
    e("s_lshr_b32 s38, s47, 3")
    e("s_lshl_b32 s36, s46, 2")
    e("s_add_u32 s36, s36, s38")
    e("s_and_b32 s37, s47, 7")
    e("s_cmp_ge_u32 s39, 8")
    e("s_cbranch_scc1 L_helpers")

    e("s_and_b32 s40, s39, 3")
    e("s_lshr_b32 s41, s39, 2")
    e("s_lshl_b32 s44, s39, 13")
    e(f"s_add_u32 s44, s44, {A_BASE}")
    e(f"v_bfe_u32 v{T+2}, v{L}, 2, 2")
    e(f"v_lshlrev_b32 v{T+2}, 5, v{T+2}")
    e(f"v_lshrrev_b32 v{T+1}, 5, v{L}")
    e(f"v_lshl_add_u32 v{T+2}, v{T+1}, 4, v{T+2}")
    e(f"v_and_b32 v{T+3}, 3, v{L}")
    e(f"v_lshl_add_u32 v{V_GOFF}, v{T+3}, 2, v{T+2}")
    e("s_lshl_b32 s45, s41, 10")
    e("s_waitcnt lgkmcnt(0)")
    srd(24, 6, 2048)
    GP = T + 8
    for c in range(8):
        g.vm(f"buffer_load_dword v{GP+c}, v{V_GOFF}, s[24:27], s45 offen offset:{128*c}")
    def loadG(c):
        e(f"v_lshlrev_b32 v{V_G+2*(c&1)}, 16, v{GP+c}")
        e(f"v_and_b32 v{V_G+2*(c&1)+1}, 0xffff0000, v{GP+c}")
    srd(32, 12, 8388608)
    if stamps: srd(28, 56, WS_BYTES)
    e(f"v_and_b32 v{T}, 31, v{L}")
    e(f"v_bfe_u32 v{T+2}, v{L}, 1, 3")
    e(f"v_xor_b32 v{T+2}, v{T+2}, v{T+1}")
    e(f"v_lshlrev_b32 v{T+3}, 7, v{T}")
    e(f"v_lshl_add_u32 v{T+3}, v{T+2}, 4, v{T+3}")
    e(f"v_add_u32 v{V_ARD}, s44, v{T+3}")
    for s in range(1, 4):
        e(f"v_xor_b32 v{V_ARD+s}, {32*s}, v{V_ARD}")
    e(f"v_bfe_u32 v{T+2}, v{L}, 2, 2")
    e(f"v_lshl_add_u32 v{T+3}, v{T+1}, 3, v{T+2}")
    e(f"v_lshlrev_b32 v{T+3}, 8, v{T+3}")
    e(f"v_bfe_u32 v{T+4}, v{L}, 4, 1")
    e(f"v_lshl_add_u32 v{T+3}, v{T+4}, 5, v{T+3}")
    e(f"v_and_b32 v{T+4}, 3, v{L}")
    e(f"v_lshl_add_u32 v{T+3}, v{T+4}, 3, v{T+3}")
    e("s_lshl_b32 s46, s41, 14")
    e(f"v_add_u32 v{T+3}, s46, v{T+3}")
    e("s_lshl_b32 s49, s41, 1")
    for k in range(4):
        e(f"s_xor_b32 s46, s49, {k}")
        e(f"v_xor_b32 v{T+4}, s46, v{T+2}")
        e(f"v_lshl_add_u32 v{V_BRD+k}, v{T+4}, 6, v{T+3}")
        e(f"v_add_u32 v{V_BRD2+k}, 0x10000, v{V_BRD+k}")
    for r in range(32):
        e(f"v_accvgpr_write_b32 a{r}, 0")
        e(f"v_mov_b32 v{V_ACC+r}, 0")
    e(f"v_mov_b32 v{T}, 0x3f803f80")
    e(f"v_mov_b32 v{T+1}, 0")
    e(f"v_mov_b32 v{T+2}, 0")

    rs = lambda t: V_RAW + 4 * (t % 5)
    def readA1(t):
        c, s = t >> 2, t & 3
        e(f"ds_read_b128 v[{rs(t)}:{rs(t)+3}], v{V_ARD+s} offset:{(c&1)*4096}")

    e("s_barrier")
    stamp()
    for t in range(4): readA1(t)
    e("s_waitcnt lgkmcnt(0)")
    for r in range(16):
        e(f"v_dot2_f32_bf16 v{T+1+(r&1)}, v{V_RAW+r}, v{T}, v{T+1+(r&1)}")
    e("s_waitcnt vmcnt(0)")
    loadG(0); loadG(1)
    e(f"v_add_f32 v{T+1}, v{T+1}, v{T+2}")
    e(f"v_mov_b32 v{T+3}, v{T+1}")
    e("s_nop 1")
    e(f"v_permlane32_swap_b32 v{T+3}, v{T+1}")
    e("s_nop 1")
    e(f"v_add_f32 v{T+1}, v{T+1}, v{T+3}")
    e(f"v_mul_f32 v{V_PIV}, 0x3c800000, v{T+1}")

    def norm_ops(t):
        c, s = t >> 2, t & 3
        raw = rs(t)
        vf = V_VF + (t & 1) * 4
        glo = V_G + 2 * (c & 1)
        groups = []
        for pp in range(2):
            o = []
            ps = (2 * pp, 2 * pp + 1)
            for p in ps:
                t0 = T + 2 * p
                o.append(f"v_lshlrev_b32 v{t0}, 16, v{raw+p}")
                o.append(f"v_and_b32 v{t0+1}, 0xffff0000, v{raw+p}")
            for p in ps:
                t0 = T + 2 * p
                o.append(f"v_sub_f32 v{t0}, v{t0}, v{V_PIV}")
                o.append(f"v_sub_f32 v{t0+1}, v{t0+1}, v{V_PIV}")
            for p in ps:
                t0 = T + 2 * p
                o.append(f"v_mul_f32_dpp v{t0}, v{glo}, v{t0} row_newbcast:{4*s+p} row_mask:0xf bank_mask:0xf")
                o.append(f"v_mul_f32_dpp v{t0+1}, v{glo+1}, v{t0+1} row_newbcast:{4*s+p} row_mask:0xf bank_mask:0xf")
            for p in ps:
                t0 = T + 2 * p
                o.append(f"v_cvt_pk_bf16_f32 v{vf+p}, v{t0}, v{t0+1}")
            groups.append(o[:7]); groups.append(o[7:])
        return groups

    def readB(t):
        c, s = t >> 2, t & 3
        slot = c % 3
        buf = A_BF + (t & 1) * 16
        for k in range(4):
            for h in range(2):
                if slot < 2:
                    e(f"ds_read_b64_tr_b16 a[{buf+4*k+2*h}:{buf+4*k+2*h+1}], v{V_BRD+k} offset:{slot*32768 + s*4096 + h*1024}")
                else:
                    e(f"ds_read_b64_tr_b16 a[{buf+4*k+2*h}:{buf+4*k+2*h+1}], v{V_BRD2+k} offset:{s*4096 + h*1024}")

    def accreg(k):
        return f"v[{V_ACC+16*k}:{V_ACC+16*k+15}]" if k < 2 else f"a[{16*(k-2)}:{16*(k-2)+15}]"
    EA = 12
    for t in range(-1, 32):
        g.c(f"---- step {t}")
        loadG_next = None
        if t >= 0: e("s_waitcnt lgkmcnt(0)")
        if (t + 1) % 4 == 0 and t + 1 <= 31:
            j = (t + 1) // 4
            e("s_barrier")
            if 1 <= j <= 6: loadG_next = j + 1
        if t in (-1, 7, 15, 23): stamp()
        groups = norm_ops(t + 1) if t + 1 <= 31 else [[], [], [], []]
        buf = A_BF + (t & 1) * 16
        vf = V_VF + (t & 1) * 4
        def mfma(k):
            if t >= 0:
                e(f"v_mfma_f32_32x32x16_bf16 {accreg(k)}, a[{buf+4*k}:{buf+4*k+3}], v[{vf}:{vf+3}], {accreg(k)}")
        ok = (2, 3, 0, 1) if t == 31 else (0, 1, 2, 3)
        mfma(ok[0])
        if t + 5 <= 31: readA1(t + 5)
        if t + 1 <= 31: readB(t + 1)
        for o in groups[0]: e(o)
        mfma(ok[1])
        for o in groups[1]: e(o)
        mfma(ok[2])
        for o in groups[2]: e(o)
        mfma(ok[3])
        for o in groups[3]: e(o)
        if t == 24:
            e(f"v_and_b32 v{T}, 31, v{L}")
            e(f"v_lshrrev_b32 v{T+1}, 5, v{L}")
            e("s_lshl_b32 s46, s40, 9")
            e(f"s_add_u32 s46, s46, {ROWP}")
            e(f"v_lshl_add_u32 v{EA+1}, v{T}, 4, s46")
            e("s_lshl_b32 s46, s40, 7")
            e(f"s_add_u32 s46, s46, {PIVX}")
            e(f"v_lshl_add_u32 v{EA}, v{T}, 2, s46")
            e("s_lshl_b32 s47, s41, 9")
            e(f"v_add_u32 v{EA+3}, s47, v{EA}")
            e(f"v_lshl_add_u32 v{EA}, v{T+1}, 9, v{EA}")
            e("s_lshl_b32 s46, s41, 8")
            e(f"s_add_u32 s46, s46, {SARR}")
            e(f"v_lshl_add_u32 v{EA+2}, v{T}, 2, s46")
            e(f"v_lshl_add_u32 v{EA+2}, v{T+1}, 9, v{EA+2}")
        if t == 28:
            e(f"ds_write_b32 v{EA+3}, v{V_PIV}")
        if loadG_next is not None: loadG(loadG_next)
        if t < 0: e("s_nop 1")

    g.c("---- epilogue")
    stamp()
    e(f"v_lshlrev_b32 v{T+7}, 4, v{L}")
    e("s_lshl_b32 s46, s40, 13")
    e("s_lshl_b32 s47, s41, 16")
    e("s_add_u32 s46, s46, s47")
    e(f"v_add_u32 v{T+8}, s46, v{T+7}")
    e("s_xor_b32 s46, s46, 0x10000")
    e(f"v_add_u32 v{T+9}, s46, v{T+7}")
    e(f"v_and_b32 v{T+4}, 31, v{L}")
    e(f"v_lshrrev_b32 v{T+6}, 5, v{L}")
    e("s_nop 1")
    for q in range(8):
        e(f"ds_write_b128 v{T+8}, a[{4*q}:{3+4*q}] offset:{q*1024}")
    e(f"v_and_b32 v{T+12}, 7, v{T+4}")
    e(f"v_xor_b32 v{T+12}, v{T+12}, v{T+6}")
    e(f"v_lshlrev_b32 v{T+12}, 4, v{T+12}")
    e(f"v_lshl_add_u32 v{T+12}, v{T+4}, 7, v{T+12}")
    e("s_add_u32 s46, s44, 4096")
    e(f"v_add_u32 v{T+12}, s46, v{T+12}")
    e(f"v_lshrrev_b32 v{T+13}, 3, v{L}")
    e(f"v_and_b32 v{T+14}, 7, v{L}")
    e(f"v_xor_b32 v{T+15}, v{T+14}, v{T+13}")
    e(f"v_lshlrev_b32 v{T+15}, 4, v{T+15}")
    e(f"v_lshl_add_u32 v{T+15}, v{T+13}, 7, v{T+15}")
    e(f"v_add_u32 v{T+15}, s46, v{T+15}")
    e(f"v_lshlrev_b32 v{T+14}, 4, v{T+14}")
    e(f"v_lshl_add_u32 v{T+13}, v{T+13}, 11, v{T+14}")
    for z in range(1, 4):
        e(f"v_xor_b32 v{T+z}, {z*32}, v{T+12}")
    e("s_lshl_b32 s47, s36, 18")
    e("s_lshl_b32 s48, s37, 8")
    e("s_add_u32 s47, s47, s48")
    e("s_lshl_b32 s48, s41, 7")
    e("s_add_u32 s47, s47, s48")
    e("s_lshl_b32 s48, s40, 16")
    e("s_add_u32 s47, s47, s48")
    e("s_waitcnt lgkmcnt(0)")
    e("s_barrier")
    P = 16
    RP = V_X; SV = V_X + 4; CC = 3
    e(f"ds_read_b32 v{CC}, v{EA}")
    e(f"ds_read_b128 v[{RP}:{RP+3}], v{EA+1}")
    for k in range(2):
        e(f"ds_read_b32 v{SV+2*k}, v{EA+2} offset:{k*128}")
        e(f"ds_read_b32 v{SV+2*k+1}, v{EA+2} offset:{k*128+1024}")
    for q in range(8):
        e(f"ds_read_b128 v[{P+4*q}:{P+3+4*q}], v{T+9} offset:{q*1024}")
    e("s_waitcnt lgkmcnt(8)")
    e(f"v_sub_f32 v{CC}, v{CC}, v{RP}")
    e(f"v_mov_b32 v{RP+3}, v{RP+2}")
    e("s_nop 0")
    for k in range(2):
        e(f"v_mfma_f32_32x32x2_f32 {accreg(k)}, v{SV+2*k+1}, v{RP+1}, {accreg(k)}")
        e(f"v_mfma_f32_32x32x2_f32 {accreg(k)}, v{SV+2*k}, v{CC}, {accreg(k)}")
    e("s_nop 15")
    e("s_nop 2")
    e("s_waitcnt lgkmcnt(0)")
    O = 4
    for k in range(2):
        for q in range(4):
            r0 = V_ACC + 16*k + 4*q
            p0 = P + 16*k + 4*q
            if pk:
                for j in (0, 2):
                    e(f"v_pk_add_f32 v[{p0+j}:{p0+j+1}], v[{p0+j}:{p0+j+1}], v[{r0+j}:{r0+j+1}]")
                for j in (0, 2):
                    e(f"v_pk_mul_f32 v[{p0+j}:{p0+j+1}], v[{p0+j}:{p0+j+1}], v[{RP+2}:{RP+3}]")
            else:
                for j in range(4): e(f"v_add_f32 v{p0+j}, v{p0+j}, v{r0+j}")
                for j in range(4): e(f"v_mul_f32 v{p0+j}, v{p0+j}, v{RP+2}")
            oo = O + (q & 1) * 2 + (q >> 1) * 4
            e(f"v_cvt_pk_bf16_f32 v{oo}, v{p0}, v{p0+1}")
            e(f"v_cvt_pk_bf16_f32 v{oo+1}, v{p0+2}, v{p0+3}")
            if q & 1:
                o4 = O + (q >> 1) * 4
                z = 2*k + (q >> 1)
                e("s_nop 1")
                e(f"v_permlane32_swap_b32 v{o4}, v{o4+2}")
                e(f"v_permlane32_swap_b32 v{o4+1}, v{o4+3}")
                e("s_nop 1")
                e(f"ds_write_b128 v{T+12 if z == 0 else T+z}, v[{o4}:{o4+3}]")
    e("s_waitcnt lgkmcnt(0)")
    for it in range(4):
        e(f"ds_read_b128 v[{P+4*it}:{P+3+4*it}], v{T+15} offset:{it*1024}")
    for it in range(4):
        e(f"s_waitcnt lgkmcnt({3-it})")
        if it: e(f"s_add_u32 s47, s47, {8*2048}")
        e(f"buffer_store_dwordx4 v[{P+4*it}:{P+3+4*it}], v{T+13}, s[32:35], s47 offen")
    if stamps:
        e("s_waitcnt vmcnt(0)")
        stamp()
        e("s_waitcnt lgkmcnt(0)")
        e("s_mov_b32 s30, 0x1000000")
        e("s_lshl_b32 s46, s2, 3")
        e("s_add_u32 s46, s46, s39")
        e("s_lshl_b32 s46, s46, 6")
        e("s_add_u32 s46, s46, 0x400000")
        e("v_mov_b32 v2, s46")
        for k in range(16):
            e(f"v_mov_b32 v{4+k}, s{80+k}")
        e(f"v_cmp_eq_u32 vcc, 0, v{L}")
        e("s_and_saveexec_b64 s[50:51], vcc")
        for k in range(4):
            e(f"buffer_store_dwordx4 v[{4+4*k}:{7+4*k}], v2, s[28:31], 0 offen offset:{16*k}")
        e("s_waitcnt vmcnt(0)")
    e("s_endpgm")

    g.lab("L_helpers")
    OA0, OA1, OB = 2, 3, 4
    e(f"v_lshrrev_b32 v{T}, 3, v{L}")
    e(f"v_lshlrev_b32 v{T}, 11, v{T}")
    e(f"v_and_b32 v{T+1}, 7, v{L}")
    e(f"v_lshrrev_b32 v{T+2}, 4, v{L}")
    e(f"v_xor_b32 v{T+1}, v{T+1}, v{T+2}")
    e(f"v_lshl_add_u32 v{OA0}, v{T+1}, 4, v{T}")
    e(f"v_xor_b32 v{OA1}, 64, v{OA0}")
    e(f"v_lshlrev_b32 v{T}, 11, v{T+2}")
    e(f"v_and_b32 v{T+1}, 15, v{L}")
    e(f"v_lshlrev_b32 v{T+3}, 2, v{T+2}")
    e(f"v_xor_b32 v{T+1}, v{T+1}, v{T+3}")
    e(f"v_lshl_add_u32 v{OB}, v{T+1}, 4, v{T}")
    e("s_lshl_b32 s43, s36, 18")
    e("s_lshl_b32 s45, s37, 8")
    e("s_waitcnt lgkmcnt(0)")
    srd(16, 4, 8388608)
    srd(20, 10, 2097152)
    e("s_cmp_eq_u32 s39, 11")
    e("s_cbranch_scc1 L_aux")
    e("s_cmp_eq_u32 s39, 10")
    e("s_cbranch_scc1 L_load2")
    e("s_sub_u32 s40, s39, 8")
    e("s_lshl_b32 s46, s40, 10")
    e("s_add_u32 s43, s43, s46")
    e("s_lshl_b32 s46, s40, 20")
    e("s_add_u32 s45, s45, s46")
    e("s_lshl_b32 s44, s40, 15")
    e(f"s_add_u32 s44, s44, {A_BASE}")
    e("s_lshl_b32 s49, s40, 14")

    def loader(kind):
        g.nvm = 0
        ids = {}
        def dmaA(c):
            if kind != 0: return
            for i in range(4):
                for q in range(4):
                    e(f"s_add_u32 m0, s44, {i*8192 + (c&1)*4096 + q*1024}")
                    e(f"s_add_u32 s46, s43, {(32*i + 8*q)*2048 + c*128}")
                    ids[('A', c)] = g.vm(f"buffer_load_dwordx4 v{OA0 if q%2==0 else OA1}, s[16:19], s46 offen lds")
        def dmaB(c):
            if kind == 0:
                for q in range(8):
                    e(f"s_add_u32 m0, s49, {(c%3)*32768 + q*1024}")
                    e(f"s_add_u32 s46, s45, {(c*64 + 4*q)*2048}")
                    ids[('B', c)] = g.vm(f"buffer_load_dwordx4 v{OB}, s[20:23], s46 offen lds")
            else:
                for h in range(2):
                    for q in range(8, 16):
                        e(f"s_mov_b32 m0, {(c%3)*32768 + h*16384 + q*1024}")
                        e(f"s_add_u32 s46, s45, {(h*512 + c*64 + 4*q)*2048}")
                        ids[('B', c)] = g.vm(f"buffer_load_dwordx4 v{OB}, s[20:23], s46 offen lds")
        def need(*keys):
            ks = [ids[k] for k in keys if k in ids]
            if ks: g.wait_vm(max(ks))
        dmaA(0); dmaB(0)
        if early: dmaA(1); dmaB(1)
        need(('A', 0))
        e("s_barrier")
        if not early: dmaA(1); dmaB(1)
        need(('B', 0), ('A', 1))
        e("s_barrier")
        dmaA(2)
        need(('B', 1), ('A', 2))
        e("s_barrier")
        dmaB(2); dmaA(3); dmaB(3)
        need(('B', 2), ('A', 3))
        e("s_barrier")
        for j in range(2, 7):
            if j + 2 <= 7:
                dmaA(j + 2); dmaB(j + 2)
            need(('B', j + 1), ('A', j + 2))
            e("s_barrier")
        e("s_barrier")
        e("s_endpgm")
    loader(0)
    g.lab("L_load2")
    loader(1)

    g.lab("L_aux")
    g.nvm = 0
    SCH = {0: [8,0,0,0], 1: [0,0,8,0], 2: [0,3,5,0], 3: [2,2,4,0], 4: [0,4,4,0], 5: [0,2,3,3], 6:[2,3,3,0], 7:[0,8,0,0]}[sch]
    PA, PL, XO, WO = 5, 6, 7, 2
    e("s_lshl_b32 s47, s36, 16")
    e("s_add_u32 s47, s47, s45")
    for q in range(8):
        e(f"s_mov_b32 m0, {65536 + q*1024}")
        e(f"s_add_u32 s48, s47, {4*q*2048}")
        g.vm(f"buffer_load_dwordx4 v{OB}, s[20:23], s48 offen lds")
    srd(24, 6, 2048); srd(28, 8, 2048)
    GBF = 96
    e(f"v_lshrrev_b32 v{T}, 5, v{L}")
    e(f"v_lshlrev_b32 v{T}, 4, v{T}")
    e("s_lshl_b32 s47, s36, 6")
    e("s_mov_b32 s50, 0x55555555")
    e("s_mov_b32 s51, 0x55555555")
    e("s_mov_b64 exec, s[50:51]")
    for s in range(2):
        g.vm(f"buffer_load_dwordx4 v[{GBF+4*s}:{GBF+4*s+3}], v{T}, s[24:27], s47 offen offset:{32*s}")
    e("s_not_b64 exec, exec")
    for s in range(2):
        gid = g.vm(f"buffer_load_dwordx4 v[{GBF+4*s}:{GBF+4*s+3}], v{T}, s[28:31], s47 offen offset:{32*s}")
    e("s_mov_b64 exec, -1")
    e(f"v_and_b32 v{XO}, 15, v{L}")
    e(f"v_lshlrev_b32 v{XO}, 11, v{XO}")
    e(f"v_lshrrev_b32 v{T}, 4, v{L}")
    e(f"v_lshl_add_u32 v{XO}, v{T}, 4, v{XO}")
    e("s_lshl_b32 s46, s37, 15")
    e("s_add_u32 s43, s43, s46")
    e(f"v_lshrrev_b32 v{WO}, 1, v{L}")
    e(f"v_lshlrev_b32 v{WO}, 11, v{WO}")
    e(f"v_and_b32 v{T}, 1, v{L}")
    e(f"v_lshl_add_u32 v{WO}, v{T}, 7, v{WO}")
    e("s_lshr_b32 s64, s38, 1")
    e("s_lshl_b32 s64, s64, 20")
    e("s_and_b32 s47, s38, 1")
    e("s_lshl_b32 s47, s47, 16")
    e("s_add_u32 s64, s64, s47")
    e("s_add_u32 s64, s64, s45")
    xregs = []
    cn = [0]
    def xload(k):
        for c in range(cn[0], cn[0] + k):
            if c:
                e(f"s_add_u32 s46, s64, {c*64*2048}")
                g.vm(f"buffer_load_dword v3, v{WO}, s[20:23], s46 offen")
            for st in (2*c, 2*c+1, 16+2*c, 17+2*c):
                n = len(xregs)
                dst = f"v[{8+4*n}:{11+4*n}]" if n < 16 else f"a[{4*(n-16)}:{4*(n-16)+3}]"
                xregs.append(dst)
                g.vm(f"buffer_load_dwordx4 {dst}, v{XO}, s[16:19], s43 offen offset:{64*st}")
        cn[0] += k
    assert SCH[0] + SCH[1] <= 4
    xload(SCH[0])
    srd(32, 56, WS_BYTES)
    srd(60, 14, 256)
    e(f"v_lshlrev_b32 v{PA}, 2, v{L}")
    e("s_mov_b32 s54, 0x01010101")
    BR = 72
    U = 92
    e(f"v_lshrrev_b32 v{U}, 5, v{L}")
    e(f"v_bfe_u32 v{U+1}, v{L}, 2, 2")
    e(f"v_lshl_add_u32 v{U+2}, v{U}, 3, v{U+1}")
    e(f"v_lshlrev_b32 v{U+2}, 8, v{U+2}")
    e(f"v_bfe_u32 v{U+3}, v{L}, 4, 1")
    e(f"v_lshl_add_u32 v{U+2}, v{U+3}, 5, v{U+2}")
    e(f"v_and_b32 v{U+3}, 3, v{L}")
    e(f"v_lshl_add_u32 v{U+2}, v{U+3}, 3, v{U+2}")
    e(f"v_add_u32 v{U+2}, 0x10000, v{U+2}")
    for k in range(4):
        e(f"v_xor_b32 v{U+3}, {k}, v{U+1}")
        e(f"v_lshl_add_u32 v{BR+k}, v{U+3}, 6, v{U+2}")
    for r in range(64):
        e(f"v_accvgpr_write_b32 a{r}, 0")
    e(f"v_and_b32 v{U+1}, 31, v{L}")
    e(f"v_lshlrev_b32 v{U+2}, 9, v{U+1}")
    e(f"v_lshl_add_u32 v{U+2}, v{U}, 4, v{U+2}")
    e("s_lshl_b32 s46, s37, 5")
    e("s_add_u32 s46, s46, s36")
    e("s_lshl_b32 s46, s46, 10")
    e(f"s_add_u32 s59, s46, {WS_S}")
    e("s_barrier")
    xload(SCH[1])
    e("s_barrier")
    g.wait_vm(gid)
    for s in range(2):
        for k in range(4):
            for h in range(2):
                e(f"ds_read_b64_tr_b16 v[{76+4*k+2*h}:{77+4*k+2*h}], v{BR+k} offset:{s*4096 + h*1024}")
        e("s_waitcnt lgkmcnt(0)")
        for k in range(4):
            e(f"v_mfma_f32_32x32x16_bf16 a[{16*k}:{16*k+15}], v[{76+4*k}:{79+4*k}], v[{GBF+4*s}:{GBF+4*s+3}], a[{16*k}:{16*k+15}]")
    if cn[0] < 4: xload(4 - cn[0])
    e("s_nop 7"); e("s_nop 7")
    e(f"v_cmp_gt_u32 vcc, 2, v{U+1}")
    e("s_and_saveexec_b64 s[50:51], vcc")
    for k in range(4):
        for q in range(4):
            g.vm(f"buffer_store_dwordx4 a[{16*k+4*q}:{16*k+4*q+3}], v{U+2}, s[32:35], s59 offen offset:{k*128+q*32} sc0 sc1")
    e("s_mov_b64 exec, -1")
    e("s_nop 1")
    xload(4)
    for r in range(4):
        e(f"v_mov_b32 v{76+r}, 0x3f803f80")
    for r in range(8):
        e(f"v_mov_b32 v{80+r}, 0")
    e("s_barrier")
    e("s_barrier")
    e("s_waitcnt vmcnt(0)")
    for n in range(32):
        e(f"v_mfma_f32_16x16x32_bf16 v[80:83], v[76:79], {xregs[n]}, v[80:83]")
        e(f"v_mfma_f32_16x16x32_bf16 v[84:87], {xregs[n]}, {xregs[n]}, v[84:87]")
    def row_final(S1, S2, D):
        mean, var, t1 = S1, S2, D + 3
        e(f"v_mul_f32 v{mean}, 0x3a800000, v{mean}")
        e(f"v_mul_f32 v{var}, 0x3a800000, v{var}")
        e(f"v_fma_f32 v{var}, -v{mean}, v{mean}, v{var}")
        e(f"v_max_f32 v{var}, 0, v{var}")
        e(f"v_cvt_pk_bf16_f32 v{t1}, v{mean}, v{var}")
        e(f"v_lshlrev_b32 v{D}, 16, v{t1}")
        e(f"v_and_b32 v{var}, 0xffff0000, v{t1}")
        e(f"v_add_f32 v{var}, 0x3727c5ac, v{var}")
        e(f"v_cvt_pk_bf16_f32 v{t1}, v{var}, v{var}")
        e(f"v_lshlrev_b32 v{var}, 16, v{t1}")
        e(f"v_sqrt_f32 v{var}, v{var}")
        e("s_nop 0")
        e(f"v_cvt_pk_bf16_f32 v{t1}, v{var}, v{var}")
        e(f"v_lshlrev_b32 v{D+1}, 16, v{t1}")
        e(f"v_rcp_f32 v{D+2}, v{D+1}")
        e("s_nop 0")
    e(f"v_and_b32 v{U}, 3, v{L}")
    e(f"v_bfe_u32 v{U+1}, v{L}, 2, 2")
    e(f"v_lshrrev_b32 v{U+2}, 4, v{L}")
    e("s_nop 7")
    for u in range(1, 4):
        e(f"v_cmp_eq_u32 vcc, {u}, v{U}")
        e("s_nop 1")
        e(f"v_cndmask_b32 v84, v84, v{84+u}, vcc")
    row_final(80, 84, 88)
    e(f"v_and_b32 v{U}, 15, v{L}")
    e(f"v_lshlrev_b32 v{U}, 4, v{U}")
    e("s_lshl_b32 s46, s36, 11")
    e("s_lshl_b32 s47, s37, 8")
    e("s_add_u32 s46, s46, s47")
    e(f"v_cmp_eq_u32 vcc, v{U+1}, v{U+2}")
    e("s_and_saveexec_b64 s[50:51], vcc")
    e(f"buffer_store_dwordx4 v[88:91], v{U}, s[32:35], s46 offen sc0 sc1")
    e("s_mov_b64 exec, -1")
    e("s_barrier")
    e("s_waitcnt vmcnt(0)")
    e("s_lshl_b32 s46, s36, 3")
    e("s_add_u32 s46, s46, s37")
    e(f"v_mov_b32 v{U}, s46")
    e(f"v_mov_b32 v{U+1}, 1")
    e("s_mov_b64 exec, 1")
    e(f"buffer_store_byte v{U+1}, v{U}, s[60:63], 0 offen sc0 sc1")
    e("s_mov_b64 exec, -1")

    def poll_issue():
        e(f"buffer_load_dword v{PL}, v{PA}, s[60:63], 0 offen sc0 sc1")
    def poll_check():
        e(f"v_cmp_ne_u32 vcc, s54, v{PL}")
    def gather_issue():
        e(f"v_lshlrev_b32 v{U}, 4, v{L}")
        e("s_lshl_b32 s46, s36, 11")
        e(f"buffer_load_dwordx4 v[8:11], v{U}, s[32:35], s46 offen sc0 sc1")
        e(f"buffer_load_dwordx4 v[12:15], v{U}, s[32:35], s46 offen offset:1024 sc0 sc1")
        e("s_lshl_b32 s46, s37, 15")
        e(f"s_add_u32 s46, s46, {WS_S}")
        for j in range(32):
            if j % 4 == 0 and j: e("s_add_u32 s46, s46, 4096")
            dst = f"v[{24+4*j}:{27+4*j}]" if j < 16 else f"a[{4*(j-16)}:{4*(j-16)+3}]"
            e(f"buffer_load_dwordx4 {dst}, v{U}, s[32:35], s46 offen offset:{(j%4)*1024} sc0 sc1")
    def gather_sum():
        for r in range(4): e(f"v_add_f32 v{16+r}, v{24+r}, v{28+r}")
        for j in range(2, 16):
            for r in range(4): e(f"v_add_f32 v{16+r}, v{16+r}, v{24+4*j+r}")
        for r in range(64): e(f"v_accvgpr_read_b32 v{24+r}, a{r}")
        for r in range(4): e(f"v_add_f32 v{20+r}, v{24+r}, v{28+r}")
        for j in range(2, 16):
            for r in range(4): e(f"v_add_f32 v{20+r}, v{20+r}, v{24+4*j+r}")
    def params_write():
        e(f"v_lshlrev_b32 v{U}, 4, v{L}")
        e(f"v_add_u32 v{U+1}, {ROWP}, v{U}")
        e(f"ds_write_b128 v{U+1}, v[8:11]")
        e(f"ds_write_b128 v{U+1}, v[12:15] offset:1024")
        e(f"v_lshrrev_b32 v{U+2}, 5, v{L}")
        e(f"v_and_b32 v{U+3}, 31, v{L}")
        e(f"v_lshlrev_b32 v{U+3}, 4, v{U+3}")
        e(f"v_lshl_add_u32 v{U+3}, v{U+2}, 10, v{U+3}")
        e(f"v_add_u32 v{U+3}, {SARR}, v{U+3}")
        e(f"ds_write_b128 v{U+3}, v[16:19]")
        e(f"ds_write_b128 v{U+3}, v[20:23] offset:512")
    e("s_mov_b32 s53, 0")
    e("s_barrier")
    e("s_barrier")
    if not force_fb: poll_issue()
    e("s_barrier")
    if not force_fb:
        e("s_waitcnt vmcnt(0)")
        poll_check()
        e("s_cbranch_vccnz L_early_no")
        e("s_mov_b32 s53, 1")
        gather_issue()
        g.lab("L_early_no")
    e("s_barrier")
    e("s_cmp_lg_u32 s53, 0")
    e("s_cbranch_scc1 L_gdone")
    e(f"s_mov_b32 s52, {0 if force_fb==1 else 40000}")
    g.lab("L_poll")
    poll_issue()
    e("s_waitcnt vmcnt(0)")
    poll_check()
    if force_fb != 1:
        e("s_cbranch_vccz L_gather")
    e("s_cmp_eq_u32 s52, 0")
    e("s_cbranch_scc1 L_fallback")
    e("s_sub_u32 s52, s52, 1")
    e("s_sleep 2")
    e("s_branch L_poll")
    g.lab("L_gather")
    gather_issue()
    g.lab("L_gdone")
    e("s_waitcnt vmcnt(0)")
    gather_sum()
    g.lab("L_final")
    params_write()
    e("s_waitcnt lgkmcnt(0)")
    e("s_barrier")
    e("s_endpgm")

    g.lab("L_fallback")
    e("s_mov_b32 s55, 0x3f803f80")
    e(f"v_cmp_lt_u32 vcc, 31, v{L}")
    e("s_mov_b64 s[50:51], vcc")
    for a in range(2):
        e(f"v_lshlrev_b32 v{U}, 11, v{L}")
        e("s_lshl_b32 s46, s36, 18")
        e(f"s_add_u32 s46, s46, {a << 17}")
        e("v_mov_b32 v30, 0"); e("v_mov_b32 v31, 0")
        e("s_mov_b32 s52, 128")
        g.lab(f"L_fb1_{a}")
        e(f"buffer_load_dwordx4 v[24:27], v{U}, s[16:19], s46 offen")
        e("s_waitcnt vmcnt(0)")
        for r in range(4):
            e(f"v_dot2_f32_bf16 v30, v{24+r}, s55, v30")
            e(f"v_dot2_f32_bf16 v31, v{24+r}, v{24+r}, v31")
        e("s_add_u32 s46, s46, 16")
        e("s_sub_u32 s52, s52, 1")
        e("s_cmp_lg_u32 s52, 0")
        e(f"s_cbranch_scc1 L_fb1_{a}")
        e("s_nop 2")
        row_final(30, 31, 8 + 4*a)
        e(f"v_and_b32 v{U}, 31, v{L}")
        e(f"v_lshlrev_b32 v{U}, 3, v{U}")
        e("s_lshl_b32 s46, s37, 8")
        e(f"s_add_u32 s46, s46, {a << 20}")
        e(f"s_mov_b32 s47, {a << 10}")
        e(f"v_mov_b32 v{U+1}, 0")
        for r in range(4): e(f"v_mov_b32 v{16+4*a+r}, 0")
        e("s_mov_b32 s52, 512")
        g.lab(f"L_fb2_{a}")
        e(f"buffer_load_dwordx2 v[24:25], v{U}, s[20:23], s46 offen")
        e(f"buffer_load_ushort v26, v{U+1}, s[24:27], s47 offen")
        e(f"buffer_load_ushort v27, v{U+1}, s[28:31], s47 offen")
        e("s_waitcnt vmcnt(0)")
        e("v_cndmask_b32 v26, v26, v27, s[50:51]")
        e("v_lshlrev_b32 v26, 16, v26")
        e("v_lshlrev_b32 v28, 16, v24"); e("v_and_b32 v29, 0xffff0000, v24")
        e("v_lshlrev_b32 v30, 16, v25"); e("v_and_b32 v31, 0xffff0000, v25")
        for r in range(4): e(f"v_fmac_f32 v{16+4*a+r}, v{28+r}, v26")
        e("s_add_u32 s46, s46, 2048")
        e("s_add_u32 s47, s47, 2")
        e("s_sub_u32 s52, s52, 1")
        e("s_cmp_lg_u32 s52, 0")
        e(f"s_cbranch_scc1 L_fb2_{a}")
    e("s_branch L_final")
    g.lab("L_end")
    e("s_endpgm")

    out = HDR
    out += "; Override launch geometry by editing the next line.\n"
    out += f"; @launch grid=(256,1,1) block=(768,1,1) lds={LDS_BYTES}\n"
    out += '.amdgcn_target "amdgcn-amd-amdhsa--gfx950"\n.text\n'
    out += f".globl {NAME}\n.p2align 8\n.type {NAME},@function\n{NAME}:\n"
    out += "\n".join(x for x in g.l if x is not None and x.strip()) + "\n"
    out += f""".section .rodata,"a"
.p2align 6
.amdhsa_kernel {NAME}
  .amdhsa_next_free_vgpr {NV+NA}
  .amdhsa_next_free_sgpr 96
  .amdhsa_accum_offset {NV}
  .amdhsa_group_segment_fixed_size 0
  .amdhsa_kernarg_size 56
  .amdhsa_user_sgpr_count 2
  .amdhsa_user_sgpr_kernarg_segment_ptr 1
  .amdhsa_system_sgpr_workgroup_id_x 1
.end_amdhsa_kernel
"""
    return out

if __name__ == '__main__':
    kw = {}
    for a in sys.argv[2:]:
        k, v = a.split('='); kw[k] = int(v)
    open(sys.argv[1], 'w').write(gen(**kw))
```

```python
import sys

NAME = "standalone__layernorm_linear__sampling_kernel"
HDR = open('standalone__layernorm_linear__sampling.s.ref').read().split('; Override launch')[0]

NSLOT = 5
B_BASE = 0
A_BASE = NSLOT * 16384
GB_BASE = A_BASE + 65536
LDS_BYTES = GB_BASE + 4096
X_BASE = 0
ST_BASE = A_BASE
S_BASE = A_BASE + 4096

V_TID = 0
V_OFFA0, V_OFFA1, V_OFFB = 1, 2, 3
V_ARD = 4
V_BRD = 8
V_BRD2 = 12
V_GBRD = 16
V_PIV = 17
V_SU0, V_SU1, V_SQ0, V_SQ1 = 18, 19, 20, 21
V_LANE = 22
V_TMPX = 23
V_G = 24
V_RAW = 40
V_VF = 72
V_T = 80
V_E = 96
NV = 128
A_ACC = 0
A_SACC = 64
A_BF = 80
A_GB = 112
NA = 120

class G:
    def __init__(self):
        self.l = []
        self.nvm = 0
    def e(self, s):
        self.l.append("    " + s)
    def lab(self, s):
        self.l.append(s + ":")
    def c(self, s):
        self.l.append("    ; " + s)
    def vm(self, s):
        self.e(s); self.nvm += 1
        return self.nvm
    def wait_vm(self, idx, extra=""):
        n = self.nvm - idx
        assert 0 <= n <= 63
        self.e(f"s_waitcnt vmcnt({n}){extra}")

def gen(stats_inloop=True, stamps=False, nodma=0, nobar=0, novalu=0, nomfma=0, nolds=0, nos=0, dbg=0):
    g = G()
    e = g.e
    nst = [0]
    def stamp():
        if stamps:
            e(f"s_{'memtime' if stamps==2 else 'memrealtime'} s[{80+2*nst[0]}:{81+2*nst[0]}]")
            nst[0] += 1
    e("s_cmp_ge_u32 s2, 256")
    e("s_cbranch_scc1 L_end")
    stamp()
    if dbg:
        e("s_memrealtime s[80:81]")
        e("s_load_dwordx2 s[14:15], s[0:1], 40")
    e("s_load_dwordx8 s[4:11], s[0:1], 0")
    if stamps: e("s_load_dwordx2 s[14:15], s[0:1], 48")
    e("s_load_dwordx2 s[12:13], s[0:1], 32")
    e("s_and_b32 s46, s2, 7")
    e("s_lshr_b32 s47, s2, 3")
    e("s_lshr_b32 s48, s47, 3")
    e("s_lshl_b32 s36, s46, 2")
    e("s_add_u32 s36, s36, s48")
    e("s_and_b32 s37, s47, 7")
    e("s_lshl_b32 s38, s48, 1")
    e("s_add_u32 s38, s38, s37")
    e("s_and_b32 s38, s38, 7")
    e(f"v_lshrrev_b32 v{V_TMPX}, 6, v0")
    e(f"v_and_b32 v{V_LANE}, 63, v0")
    e(f"v_readfirstlane_b32 s39, v{V_TMPX}")
    e("s_nop 3")
    e("s_and_b32 s40, s39, 3")
    e("s_lshr_b32 s41, s39, 2")
    e("s_lshl_b32 s49, s41, 1")
    e("s_add_u32 s49, s49, s40")
    e("s_and_b32 s49, s49, 3")
    e("s_lshl_b32 s42, s36, 18")
    e("s_lshl_b32 s46, s40, 16")
    e("s_add_u32 s42, s42, s46")
    e("s_lshl_b32 s46, s41, 10")
    e("s_add_u32 s42, s42, s46")
    e("s_lshl_b32 s43, s37, 8")
    e("s_lshl_b32 s46, s41, 20")
    e("s_add_u32 s43, s43, s46")
    e("s_lshl_b32 s46, s40, 14")
    e("s_add_u32 s43, s43, s46")
    e("s_lshl_b32 s44, s39, 13")
    e(f"s_add_u32 s44, s44, {A_BASE}")
    e("s_lshl_b32 s45, s41, 13")
    e("s_lshl_b32 s46, s40, 11")
    e("s_add_u32 s45, s45, s46")
    for c in range(8):
        e(f"s_add_u32 s46, s38, {c}")
        e("s_and_b32 s46, s46, 7")
        e("s_lshl_b32 s47, s46, 7")
        e(f"s_add_u32 s{52+c}, s42, s47")
        e("s_lshl_b32 s48, s41, 10")
        e(f"s_add_u32 s{68+c}, s48, s47")
        e("s_lshl_b32 s47, s46, 17")
        e(f"s_add_u32 s{60+c}, s43, s47")
    L = V_LANE
    T = V_T
    e(f"v_lshrrev_b32 v{T}, 3, v{L}")
    e(f"v_lshlrev_b32 v{T}, 11, v{T}")
    e(f"v_and_b32 v{T+1}, 7, v{L}")
    e(f"v_lshrrev_b32 v{T+2}, 4, v{L}")
    e(f"v_xor_b32 v{T+1}, v{T+1}, v{T+2}")
    e(f"v_lshl_add_u32 v{V_OFFA0}, v{T+1}, 4, v{T}")
    e(f"v_xor_b32 v{V_OFFA1}, 64, v{V_OFFA0}")
    e(f"v_lshlrev_b32 v{T}, 11, v{T+2}")
    e(f"v_and_b32 v{T+1}, 15, v{L}")
    e(f"v_lshlrev_b32 v{T+3}, 2, v{T+2}")
    e(f"v_xor_b32 v{T+1}, v{T+1}, v{T+3}")
    e(f"v_lshl_add_u32 v{V_OFFB}, v{T+1}, 4, v{T}")
    e("s_waitcnt lgkmcnt(0)")
    def srd(d, b, n):
        e(f"s_mov_b32 s{d}, s{b}")
        e(f"s_and_b32 s{d+1}, s{b+1}, 0xffff")
        e(f"s_mov_b32 s{d+2}, {n}")
        e(f"s_mov_b32 s{d+3}, 0x00020000")
    srd(16, 4, 8388608)
    srd(20, 10, 2097152)
    srd(24, 6, 2048)
    srd(28, 8, 2048)
    srd(32, 12, 8388608)

    ids = {}
    def dmaA(c):
        slot = c & 1
        for q in range(4):
            e(f"s_add_u32 m0, s44, {slot*4096 + q*1024}")
            e(f"s_add_u32 s46, s{52+c}, {8*q*2048}")
            vo = V_OFFA0 if q % 2 == 0 else V_OFFA1
            ids[('A', c)] = g.vm(f"buffer_load_dwordx4 v{vo}, s[16:19], s46 offen lds")
    def dmaB(p):
        c, half = p >> 1, p & 1
        slot = p % NSLOT
        for q in range(2):
            e(f"s_add_u32 m0, s45, {B_BASE + slot*16384 + q*1024}")
            e(f"s_add_u32 s46, s{60+c}, {(half*32 + 4*q)*2048}")
            ids[('B', p)] = g.vm(f"buffer_load_dwordx4 v{V_OFFB}, s[20:23], s46 offen lds")

    dmaA(0)
    dmaB(0)
    e(f"v_lshrrev_b32 v{T}, 3, v{L}")
    e(f"v_add_u32 v{T}, s38, v{T}")
    e(f"v_and_b32 v{T}, 7, v{T}")
    e(f"v_lshlrev_b32 v{T}, 7, v{T}")
    e(f"v_and_b32 v{T+1}, 7, v{L}")
    e(f"v_lshl_add_u32 v{T}, v{T+1}, 4, v{T}")
    e("s_and_b32 s46, s39, 1")
    e("s_lshl_b32 s46, s46, 10")
    e("s_and_b32 s47, s39, 3")
    e("s_lshl_b32 s47, s47, 10")
    e(f"s_add_u32 m0, s47, {GB_BASE}")
    e("s_bitcmp1_b32 s39, 1")
    e("s_cbranch_scc1 L_gb_b")
    e(f"buffer_load_dwordx4 v{T}, s[24:27], s46 offen lds")
    e("s_branch L_gb_done")
    g.lab("L_gb_b")
    e(f"buffer_load_dwordx4 v{T}, s[28:31], s46 offen lds")
    g.lab("L_gb_done")
    g.nvm += 1
    ids['GB'] = g.nvm
    e(f"v_bfe_u32 v{T+2}, v{L}, 3, 1")
    e(f"v_lshlrev_b32 v{T+2}, 5, v{T+2}")
    e(f"v_lshrrev_b32 v{T+3}, 5, v{L}")
    e(f"v_lshl_add_u32 v{T+2}, v{T+3}, 4, v{T+2}")
    e(f"v_and_b32 v{T+3}, 7, v{L}")
    e(f"v_lshl_add_u32 v{T+2}, v{T+3}, 1, v{T+2}")
    for k in range(16):
        ids['G'] = g.vm(f"buffer_load_ushort v{V_G+k}, v{T+2}, s[24:27], s{68+(k>>1)} offen offset:{64*(k&1)}")
    dmaB(1)
    dmaA(1)
    dmaB(2); dmaB(3); dmaB(4)

    e(f"v_and_b32 v{T}, 31, v{L}")
    e(f"v_lshrrev_b32 v{T+1}, 5, v{L}")
    e(f"v_bfe_u32 v{T+2}, v{L}, 1, 3")
    e(f"v_xor_b32 v{T+2}, v{T+2}, v{T+1}")
    e(f"v_lshlrev_b32 v{T+3}, 7, v{T}")
    e(f"v_lshl_add_u32 v{T+3}, v{T+2}, 4, v{T+3}")
    e(f"v_add_u32 v{V_ARD}, s44, v{T+3}")
    for s in range(1, 4):
        e(f"v_xor_b32 v{V_ARD+s}, {32*s}, v{V_ARD}")
    e(f"v_and_b32 v{T+2}, 1, v{L}")
    e(f"v_lshlrev_b32 v{T+2}, 11, v{T+2}")
    e(f"v_lshl_add_u32 v{T+2}, v{T+1}, 4, v{T+2}")
    e("s_lshl_b32 s46, s41, 10")
    e(f"s_add_u32 s46, s46, {GB_BASE}")
    e(f"v_add_u32 v{V_GBRD}, s46, v{T+2}")
    e(f"v_bfe_u32 v{T+2}, v{L}, 2, 2")
    e(f"v_lshl_add_u32 v{T+3}, v{T+1}, 3, v{T+2}")
    e(f"v_lshlrev_b32 v{T+3}, 8, v{T+3}")
    e(f"v_bfe_u32 v{T+4}, v{L}, 4, 1")
    e(f"v_lshl_add_u32 v{T+3}, v{T+4}, 5, v{T+3}")
    e(f"v_and_b32 v{T+4}, 3, v{L}")
    e(f"v_lshl_add_u32 v{T+3}, v{T+4}, 3, v{T+3}")
    e("s_lshl_b32 s46, s41, 13")
    e(f"v_add_u32 v{T+3}, s46, v{T+3}")
    for k in range(4):
        e(f"s_add_u32 s46, s49, {k}")
        e("s_and_b32 s46, s46, 3")
        e(f"v_xor_b32 v{T+4}, s46, v{T+2}")
        e(f"v_lshl_add_u32 v{V_BRD+k}, v{T+4}, 6, v{T+3}")
        e(f"v_add_u32 v{V_BRD2+k}, 0x10000, v{V_BRD+k}")
    for r in range(80):
        e(f"v_accvgpr_write_b32 a{r}, 0")
    for r in (V_SU0, V_SU1, V_SQ0, V_SQ1):
        e(f"v_mov_b32 v{r}, 0")

    def readA(c):
        for s in range(4):
            r = V_RAW + (c & 1) * 16 + 4 * s
            e(f"ds_read_b128 v[{r}:{r+3}], v{V_ARD+s} offset:{(c&1)*4096}")

    g.wait_vm(ids[('A', 0)])
    stamp()
    readA(0)
    e(f"v_mov_b32 v{T}, 0x3f803f80")
    e(f"v_mov_b32 v{T+1}, 0")
    e(f"v_mov_b32 v{T+2}, 0")
    e("s_waitcnt lgkmcnt(0)")
    for r in range(16):
        e(f"v_dot2_f32_bf16 v{T+1+(r&1)}, v{V_RAW+r}, v{T}, v{T+1+(r&1)}")
    dmaA(2)
    e("s_nop 2")
    e(f"v_add_f32 v{T+1}, v{T+1}, v{T+2}")
    e(f"v_mov_b32 v{T+2}, v{T+1}")
    e("s_nop 1")
    e(f"v_permlane32_swap_b32 v{T+2}, v{T+1}")
    e("s_nop 1")
    e(f"v_add_f32 v{T+1}, v{T+1}, v{T+2}")
    e(f"v_mul_f32 v{V_PIV}, 0x3c800000, v{T+1}")
    g.wait_vm(ids['G'])
    for k in range(16):
        e(f"v_lshlrev_b32 v{V_G+k}, 16, v{V_G+k}")
    e("s_nop 1")

    def norm_ops(t):
        c, s = t >> 2, t & 3
        raw = V_RAW + (c & 1) * 16 + 4 * s
        vf = V_VF + (t & 1) * 4
        greg = V_G + (t >> 1)
        groups = []
        for p in range(4):
            t0 = T + 2 * p
            o = []
            o.append(f"v_lshlrev_b32 v{t0}, 16, v{raw+p}")
            o.append(f"v_and_b32 v{t0+1}, 0xffff0000, v{raw+p}")
            o.append(f"v_sub_f32 v{t0}, v{t0}, v{V_PIV}")
            o.append(f"v_sub_f32 v{t0+1}, v{t0+1}, v{V_PIV}")
            if stats_inloop:
                o.append(f"v_add_f32 v{V_SU0}, v{V_SU0}, v{t0}")
                o.append(f"v_add_f32 v{V_SU1}, v{V_SU1}, v{t0+1}")
                o.append(f"v_fmac_f32 v{V_SQ0}, v{t0}, v{t0}")
                o.append(f"v_fmac_f32 v{V_SQ1}, v{t0+1}, v{t0+1}")
            n0 = (t & 1) * 8 + 2 * p
            o.append(f"v_mul_f32_dpp v{t0}, v{greg}, v{t0} row_newbcast:{n0} row_mask:0xf bank_mask:0xf")
            o.append(f"v_mul_f32_dpp v{t0+1}, v{greg}, v{t0+1} row_newbcast:{n0+1} row_mask:0xf bank_mask:0xf")
            o.append(f"v_cvt_pk_bf16_f32 v{vf+p}, v{t0}, v{t0+1}")
            groups.append(o)
        return groups

    def readB(t):
        p, s2 = t >> 1, t & 1
        slot = p % NSLOT
        buf = A_BF + (t & 1) * 16
        for k in range(4):
            for h in range(2):
                if slot < 4:
                    e(f"ds_read_b64_tr_b16 a[{buf+4*k+2*h}:{buf+4*k+2*h+1}], v{V_BRD+k} offset:{slot*16384 + s2*4096 + h*1024}")
                else:
                    e(f"ds_read_b64_tr_b16 a[{buf+4*k+2*h}:{buf+4*k+2*h+1}], v{V_BRD2+k} offset:{s2*4096 + h*1024}")
        gb = A_GB + (t & 1) * 4
        e(f"ds_read_b128 a[{gb}:{gb+3}], v{V_GBRD} offset:{t*32}")

    for t in range(-1, 32):
        g.c(f"---- step {t}")
        lg = " lgkmcnt(0)" if t >= 0 else ""
        if t % 2 != 0:
            p = (t + 1) // 2
            need = []
            if p <= 15: need.append(ids[('B', p)])
            if p == 0: need.append(ids['GB'])
            if (t + 3) % 4 == 0 and 1 <= (t + 3) // 4 <= 7: need.append(ids[('A', (t + 3) // 4)])
            if need:
                g.wait_vm(max(need), lg)
            elif lg:
                e("s_waitcnt lgkmcnt(0)")
            if p <= 15 and not (nobar and p > 0):
                e("s_barrier")
            if p >= 1 and p + 4 <= 15:
                if nodma: ids[('B', p+4)] = g.nvm
                else: dmaB(p + 4)
        else:
            e("s_waitcnt lgkmcnt(0)")
            if (t + 2) % 4 == 0:
                c = (t + 2) // 4
                if c >= 1 and c + 2 <= 7:
                    if nodma: ids[('A', c+2)] = g.nvm
                    else: dmaA(c + 2)
        if t in (-1, 7, 15, 23): stamp()
        groups = norm_ops(t + 1) if (t + 1 <= 31 and not (novalu and t > 2)) else [[], [], [], []]
        buf = A_BF + (t & 1) * 16
        vf = V_VF + (t & 1) * 4
        def mfma(k):
            if t >= 0 and not nomfma:
                e(f"v_mfma_f32_32x32x16_bf16 a[{16*k}:{16*k+15}], a[{buf+4*k}:{buf+4*k+3}], v[{vf}:{vf+3}], a[{16*k}:{16*k+15}]")
        mfma(0)
        if t + 1 <= 31 and not (nolds and t > 2):
            readB(t + 1)
        if (t + 3) % 4 == 0 and 1 <= (t + 3) // 4 <= 7:
            readA((t + 3) // 4)
        for o in groups[0]: e(o)
        mfma(1)
        for o in groups[1]: e(o)
        mfma(2)
        for o in groups[2]: e(o)
        mfma(3)
        for o in groups[3]: e(o)
        if t < 0: e("s_nop 1")
        if t >= 0 and not nomfma and not nos:
            gb = A_GB + (t & 1) * 4
            e(f"v_mfma_f32_32x32x16_bf16 a[{A_SACC}:{A_SACC+15}], a[{buf}:{buf+3}], a[{gb}:{gb+3}], a[{A_SACC}:{A_SACC+15}]")

    g.c("---- epilogue")
    stamp()
    E = V_E
    e(f"v_add_f32 v{V_SU0}, v{V_SU0}, v{V_SU1}")
    e(f"v_add_f32 v{V_SQ0}, v{V_SQ0}, v{V_SQ1}")
    e(f"v_mov_b32 v{T}, v{V_SU0}")
    e(f"v_mov_b32 v{T+1}, v{V_SQ0}")
    e("s_nop 1")
    e(f"v_permlane32_swap_b32 v{T}, v{V_SU0}")
    e(f"v_permlane32_swap_b32 v{T+1}, v{V_SQ0}")
    e("s_nop 1")
    e(f"v_add_f32 v{T}, v{T}, v{V_SU0}")
    e(f"v_add_f32 v{T+1}, v{T+1}, v{V_SQ0}")
    e(f"v_mov_b32 v{T+2}, v{V_PIV}")
    e(f"v_mov_b32 v{T+3}, 0")
    e("s_barrier")
    e(f"v_and_b32 v{T+4}, 31, v{L}")
    e("s_lshl_b32 s46, s40, 5")
    e(f"v_add_u32 v{T+4}, s46, v{T+4}")
    e(f"v_lshlrev_b32 v{T+5}, 4, v{T+4}")
    e(f"v_add_u32 v{T+5}, {ST_BASE}, v{T+5}")
    e("s_lshl_b32 s46, s41, 11")
    e(f"v_add_u32 v{T+6}, s46, v{T+5}")
    e(f"ds_write_b128 v{T+6}, v[{T}:{T+3}]")
    e(f"v_lshlrev_b32 v{T+7}, 4, v{L}")
    e("s_lshl_b32 s46, s39, 13")
    e(f"v_add_u32 v{T+8}, s46, v{T+7}")
    e("s_xor_b32 s46, s46, 0x8000")
    e(f"v_add_u32 v{T+9}, s46, v{T+7}")
    e("s_nop 7")
    e("s_nop 7")
    for q in range(8):
        e(f"ds_write_b128 v{T+8}, a[{32+4*q}:{35+4*q}] offset:{q*1024}")
    e(f"v_and_b32 v{T+10}, 31, v{L}")
    e(f"v_lshlrev_b32 v{T+11}, 9, v{T+10}")
    e(f"v_lshrrev_b32 v{T+12}, 5, v{L}")
    e(f"v_lshl_add_u32 v{T+11}, v{T+12}, 4, v{T+11}")
    e("s_lshl_b32 s46, s41, 10")
    e("s_lshl_b32 s47, s49, 7")
    e("s_add_u32 s46, s46, s47")
    e(f"s_add_u32 s46, s46, {S_BASE}")
    e(f"v_add_u32 v{T+11}, s46, v{T+11}")
    e(f"v_cmp_gt_u32 vcc, 2, v{T+10}")
    e("s_and_saveexec_b64 s[50:51], vcc")
    for q in range(4):
        e(f"ds_write_b128 v{T+11}, a[{A_SACC+4*q}:{A_SACC+3+4*q}] offset:{q*32}")
    e("s_mov_b64 exec, s[50:51]")
    e("s_waitcnt lgkmcnt(0)")
    e("s_barrier")
    e(f"ds_read_b128 v[{E}:{E+3}], v{T+5}")
    e(f"ds_read_b128 v[{E+4}:{E+7}], v{T+5} offset:2048")
    for q in range(8):
        e(f"ds_read_b128 v[{V_RAW+4*q}:{V_RAW+3+4*q}], v{T+9} offset:{q*1024}")
    e("s_waitcnt lgkmcnt(8)")
    su0, sq0, p0, su1, sq1, p1 = E, E+1, E+2, E+4, E+5, E+6
    mean, d0, d1, m2, t1, t2 = E+8, E+9, E+10, E+11, E+12, E+13
    rr, c0, c1 = E+14, E+15, E+16
    e(f"v_add_f32 v{t1}, v{p0}, v{p1}")
    e(f"v_add_f32 v{t2}, v{su0}, v{su1}")
    e(f"v_mul_f32 v{t1}, 0.5, v{t1}")
    e(f"v_mov_b32 v{mean}, 0x3a800000")
    e(f"v_fma_f32 v{mean}, v{t2}, v{mean}, v{t1}")
    e(f"v_sub_f32 v{d0}, v{mean}, v{p0}")
    e(f"v_sub_f32 v{d1}, v{mean}, v{p1}")
    e(f"v_add_f32 v{m2}, v{sq0}, v{sq1}")
    e(f"v_mul_f32 v{t1}, 0x44000000, v{d0}")
    e(f"v_fma_f32 v{t1}, v{su0}, -2.0, v{t1}")
    e(f"v_fmac_f32 v{m2}, v{d0}, v{t1}")
    e(f"v_mul_f32 v{t2}, 0x44000000, v{d1}")
    e(f"v_fma_f32 v{t2}, v{su1}, -2.0, v{t2}")
    e(f"v_fmac_f32 v{m2}, v{d1}, v{t2}")
    e(f"v_mul_f32 v{m2}, 0x3a800000, v{m2}")
    e(f"v_max_f32 v{m2}, 0, v{m2}")
    e(f"v_cvt_pk_bf16_f32 v{t1}, v{mean}, v{m2}")
    e(f"v_lshlrev_b32 v{mean}, 16, v{t1}")
    e(f"v_and_b32 v{m2}, 0xffff0000, v{t1}")
    e(f"v_add_f32 v{m2}, 0x3727c5ac, v{m2}")
    e(f"v_cvt_pk_bf16_f32 v{t1}, v{m2}, v{m2}")
    e(f"v_lshlrev_b32 v{m2}, 16, v{t1}")
    e(f"v_sqrt_f32 v{m2}, v{m2}")
    e("s_nop 0")
    e(f"v_cvt_pk_bf16_f32 v{t1}, v{m2}, v{m2}")
    e(f"v_lshlrev_b32 v{m2}, 16, v{t1}")
    e(f"v_rcp_f32 v{rr}, v{m2}")
    e(f"v_sub_f32 v{c0}, v{p0}, v{mean}")
    e(f"v_sub_f32 v{c1}, v{p1}, v{mean}")
    e(f"v_mul_f32 v{c0}, v{c0}, v{rr}")
    e(f"v_mul_f32 v{c1}, v{c1}, v{rr}")
    e(f"v_lshlrev_b32 v{T+4}, 11, v{T+4}")
    e(f"v_lshl_add_u32 v{T+4}, v{T+12}, 4, v{T+4}")
    e(f"v_lshlrev_b32 v{T+13}, 4, v{T+12}")
    e(f"v_add_u32 v{T+13}, {S_BASE}, v{T+13}")
    S = E + 18
    S = V_G
    O = V_VF
    for k in range(2):
        e(f"s_add_u32 s46, s49, {k}")
        e("s_and_b32 s46, s46, 3")
        e("s_lshl_b32 s47, s46, 7")
        e(f"v_add_u32 v{T+14}, s47, v{T+13}")
        e("s_lshl_b32 s47, s36, 18")
        e("s_lshl_b32 s48, s37, 8")
        e("s_add_u32 s47, s47, s48")
        e("s_lshl_b32 s48, s46, 6")
        e(f"s_add_u32 s{76+k}, s47, s48")
        for q in range(4):
            for a in range(4):
                e(f"ds_read_b128 v[{S+4*a}:{S+4*a+3}], v{T+14} offset:{a*512 + q*32}")
            for j in range(4):
                e(f"v_accvgpr_read_b32 v{T+j}, a{16*k+4*q+j}")
            e("s_waitcnt lgkmcnt(0)")
            for j in range(4):
                e(f"v_add_f32 v{T+j}, v{T+j}, v{V_RAW+16*k+4*q+j}")
                e(f"v_add_f32 v{S+4+j}, v{S+4+j}, v{S+12+j}")
                e(f"v_fmac_f32 v{S+4+j}, v{c0}, v{S+j}")
                e(f"v_fmac_f32 v{S+4+j}, v{c1}, v{S+8+j}")
                e(f"v_fmac_f32 v{S+4+j}, v{rr}, v{T+j}")
            oo = O + (q & 1) * 2 + (q >> 1) * 4
            e(f"v_cvt_pk_bf16_f32 v{oo}, v{S+4}, v{S+5}")
            e(f"v_cvt_pk_bf16_f32 v{oo+1}, v{S+6}, v{S+7}")
            if q & 1:
                o4 = O + (q >> 1) * 4
                e("s_nop 1")
                e(f"v_permlane32_swap_b32 v{o4}, v{o4+2}")
                e(f"v_permlane32_swap_b32 v{o4+1}, v{o4+3}")
                e("s_nop 1")
                e(f"buffer_store_dwordx4 v[{o4}:{o4+3}], v{T+4}, s[32:35], s{76+k} offen offset:{(q>>1)*32}")
        e("s_nop 1")
    if stamps:
        e("s_waitcnt vmcnt(0)")
        stamp()
        e("s_waitcnt lgkmcnt(0)")
        e("s_mov_b32 s16, s14")
        e("s_and_b32 s17, s15, 0xffff")
        e("s_mov_b32 s18, 0x1000000")
        e("s_lshl_b32 s46, s2, 3")
        e("s_add_u32 s46, s46, s39")
        e("s_lshl_b32 s46, s46, 6")
        e("v_mov_b32 v1, s46")
        for k in range(16):
            e(f"v_mov_b32 v{4+k}, s{80+k}")
        e(f"v_cmp_eq_u32 vcc, 0, v{L}")
        e("s_and_saveexec_b64 s[50:51], vcc")
        for k in range(4):
            e(f"buffer_store_dwordx4 v[{4+4*k}:{7+4*k}], v1, s[16:19], 0 offen offset:{16*k}")
        e("s_waitcnt vmcnt(0)")
    if dbg:
        e("s_waitcnt vmcnt(0)")
        e("s_memrealtime s[82:83]")
        e("s_waitcnt lgkmcnt(0)")
        e("s_cmp_lg_u32 s39, 0")
        e("s_cbranch_scc1 L_end")
        e("s_mov_b32 s16, s14")
        e("s_and_b32 s17, s15, 0xffff")
        e("s_mov_b32 s18, 256")
        e("s_not_b32 s80, s80")
        e("v_mov_b32 v1, 0")
        e("v_mov_b32 v2, s80")
        e("v_mov_b32 v3, s82")
        e("s_mov_b64 exec, 1")
        e("buffer_atomic_umax v2, v1, s[16:19], 0 offen sc1")
        e("buffer_atomic_umax v3, v1, s[16:19], 0 offen offset:4 sc1")
        e("s_waitcnt vmcnt(0)")
    g.lab("L_end")
    e("s_endpgm")

    out = HDR
    out += "; Override launch geometry by editing the next line.\n"
    out += f"; @launch grid=(256,1,1) block=(512,1,1) lds={LDS_BYTES}\n"
    out += '.amdgcn_target "amdgcn-amd-amdhsa--gfx950"\n.text\n'
    out += f".globl {NAME}\n.p2align 8\n.type {NAME},@function\n{NAME}:\n"
    out += "\n".join(g.l) + "\n"
    out += f""".section .rodata,"a"
.p2align 6
.amdhsa_kernel {NAME}
  .amdhsa_next_free_vgpr {NV+NA}
  .amdhsa_next_free_sgpr 96
  .amdhsa_accum_offset {NV}
  .amdhsa_group_segment_fixed_size 0
  .amdhsa_kernarg_size 56
  .amdhsa_user_sgpr_count 2
  .amdhsa_user_sgpr_kernarg_segment_ptr 1
  .amdhsa_system_sgpr_workgroup_id_x 1
.end_amdhsa_kernel
"""
    return out

if __name__ == '__main__':
    kw = {}
    for a in sys.argv[2:]:
        k, v = a.split('='); kw[k] = int(v)
    open(sys.argv[1], 'w').write(gen(**kw))
```

```python
import sys

NAME = "standalone__layernorm_linear__sampling_kernel"
HDR = open('standalone__layernorm_linear__sampling.s.ref').read().split('; Override launch')[0]

A_BASE = 98304
LDS_BYTES = 163840
ROWP = A_BASE
SARR = A_BASE + 2048
WS_ST = 0
WS_S = 1 << 20
WS_BYTES = 2 << 20

NV, NA = 104, 64
V_ACC = 72
V_LANE, V_PIV, V_GOFF = 1, 2, 3
V_ARD, V_BRD, V_BRD2, V_G, V_RAW, V_VF, V_T, V_X = 4, 8, 12, 16, 20, 40, 48, 64
A_BF = 32

class G:
    def __init__(self):
        self.l = []; self.nvm = 0
    def e(self, s): self.l.append("    " + s)
    def lab(self, s): self.l.append(s + ":")
    def c(self, s): self.l.append("    ; " + s)
    def vm(self, s):
        self.e(s); self.nvm += 1; return self.nvm
    def wait_vm(self, idx, extra=""):
        n = self.nvm - idx
        assert 0 <= n <= 63, n
        self.e(f"s_waitcnt vmcnt({n}){extra}")

def gen(stamps=0, force_fb=0, prio=0, order=0, dsp=0, cw=0, nopiv=0, lprio=0, est=0, pk=1, noflag=0, nopub=0, sc=0, ost=0):
    g = G(); e = g.e
    nst = [0]
    def stamp():
        if stamps:
            e(f"s_{'memtime' if stamps==2 else 'memrealtime'} s[{80+2*nst[0]}:{81+2*nst[0]}]"); nst[0] += 1
    def srd(d, b, n):
        e(f"s_mov_b32 s{d}, s{b}")
        e(f"s_and_b32 s{d+1}, s{b+1}, 0xffff")
        e(f"s_mov_b32 s{d+2}, {n}")
        e(f"s_mov_b32 s{d+3}, 0x00020000")
    L = V_LANE; T = V_T
    e("s_cmp_ge_u32 s2, 256")
    e("s_cbranch_scc1 L_end")
    stamp()
    e("s_load_dwordx8 s[4:11], s[0:1], 0")
    e("s_load_dwordx4 s[12:15], s[0:1], 32")
    e("s_load_dwordx2 s[56:57], s[0:1], 48")
    e(f"v_lshrrev_b32 v{T}, 6, v0")
    e(f"v_and_b32 v{L}, 63, v0")
    e(f"v_readfirstlane_b32 s39, v{T}")
    e("s_and_b32 s46, s2, 7")
    e("s_lshr_b32 s47, s2, 3")
    e("s_lshr_b32 s48, s47, 3")
    e("s_lshl_b32 s36, s46, 2")
    e("s_add_u32 s36, s36, s48")
    e("s_and_b32 s37, s47, 7")
    e("s_lshl_b32 s38, s48, 1")
    e("s_add_u32 s38, s38, s37")
    e("s_and_b32 s48, s46, 1")
    e("s_add_u32 s38, s38, s48")
    e("s_and_b32 s38, s38, 7")
    e("s_lshr_b32 s58, s46, 1")
    e("s_lshl_b32 s58, s58, 3")
    e("s_add_u32 s58, s58, s37")
    e("s_cmp_ge_u32 s39, 8")
    e("s_cbranch_scc1 L_loader")

    e("s_and_b32 s40, s39, 3")
    e("s_lshr_b32 s41, s39, 2")
    e("s_lshl_b32 s44, s39, 13")
    e(f"s_add_u32 s44, s44, {A_BASE}")
    e(f"v_bfe_u32 v{T+2}, v{L}, 3, 1")
    e(f"v_lshlrev_b32 v{T+2}, 5, v{T+2}")
    e(f"v_lshrrev_b32 v{T+1}, 5, v{L}")
    e(f"v_lshl_add_u32 v{T+2}, v{T+1}, 4, v{T+2}")
    e(f"v_and_b32 v{T+3}, 7, v{L}")
    e(f"v_lshl_add_u32 v{V_GOFF}, v{T+3}, 1, v{T+2}")
    for k in range(4):
        e(f"v_mov_b32 v{V_G+k}, 0")
    e("s_lshl_b32 s45, s41, 10")
    e("s_waitcnt lgkmcnt(0)")
    srd(24, 6, 2048)
    GP = T + 8
    for c in range(8):
        e(f"s_add_u32 s46, s38, {c}")
        e("s_and_b32 s46, s46, 7")
        e("s_lshl_b32 s46, s46, 7")
        e("s_add_u32 s46, s46, s45")
        g.vm(f"buffer_load_ushort v{V_RAW+2*c}, v{V_GOFF}, s[24:27], s46 offen")
        g.vm(f"buffer_load_ushort v{V_RAW+2*c+1}, v{V_GOFF}, s[24:27], s46 offen offset:64")
    def loadG(c):
        e(f"v_lshlrev_b32 v{V_G+2*(c&1)}, 16, v{GP+c}")
        e(f"v_and_b32 v{V_G+2*(c&1)+1}, 0xffff0000, v{GP+c}")
    srd(32, 12, 8388608)
    srd(28, 56, WS_BYTES)
    e(f"v_and_b32 v{T}, 31, v{L}")
    e(f"v_bfe_u32 v{T+2}, v{L}, 1, 3")
    e(f"v_xor_b32 v{T+2}, v{T+2}, v{T+1}")
    e(f"v_lshlrev_b32 v{T+3}, 7, v{T}")
    e(f"v_lshl_add_u32 v{T+3}, v{T+2}, 4, v{T+3}")
    e(f"v_add_u32 v{V_ARD}, s44, v{T+3}")
    for s in range(1, 4):
        e(f"v_xor_b32 v{V_ARD+s}, {32*s}, v{V_ARD}")
    e(f"v_bfe_u32 v{T+2}, v{L}, 2, 2")
    e(f"v_lshl_add_u32 v{T+3}, v{T+1}, 3, v{T+2}")
    e(f"v_lshlrev_b32 v{T+3}, 8, v{T+3}")
    e(f"v_bfe_u32 v{T+4}, v{L}, 4, 1")
    e(f"v_lshl_add_u32 v{T+3}, v{T+4}, 5, v{T+3}")
    e(f"v_and_b32 v{T+4}, 3, v{L}")
    e(f"v_lshl_add_u32 v{T+3}, v{T+4}, 3, v{T+3}")
    e("s_lshl_b32 s46, s41, 14")
    e(f"v_add_u32 v{T+3}, s46, v{T+3}")
    e("s_lshl_b32 s49, s41, 1")
    for k in range(4):
        e(f"s_xor_b32 s46, s49, {k}")
        e(f"v_xor_b32 v{T+4}, s46, v{T+2}")
        e(f"v_lshl_add_u32 v{V_BRD+k}, v{T+4}, 6, v{T+3}")
        e(f"v_add_u32 v{V_BRD2+k}, 0x10000, v{V_BRD+k}")
    for r in range(32):
        e(f"v_accvgpr_write_b32 a{r}, 0")
        e(f"v_mov_b32 v{V_ACC+r}, 0")
    e(f"v_lshlrev_b32 v{V_X}, 3, v{T}")
    e("s_lshl_b32 s46, s36, 14")
    e("s_lshl_b32 s47, s41, 3")
    e("s_add_u32 s47, s47, s38")
    e("s_lshl_b32 s47, s47, 10")
    e("s_add_u32 s46, s46, s47")
    e("s_lshl_b32 s47, s40, 8")
    e("s_add_u32 s59, s46, s47")
    Q = T - 8 + 0
    e(f"v_mov_b32 v{T}, 0x3f803f80")
    for k in range(4):
        e(f"v_mov_b32 v{T+1+k}, 0")

    rs = lambda t: V_RAW + 4 * (t % 5)
    def readA1(t):
        c, s = t >> 2, t & 3
        e(f"ds_read_b128 v[{rs(t)}:{rs(t)+3}], v{V_ARD+s} offset:{(c&1)*4096}")

    e("s_waitcnt vmcnt(0)")
    for c in range(8):
        e(f"v_lshl_or_b32 v{GP+c}, v{V_RAW+2*c+1}, 16, v{V_RAW+2*c}")
    loadG(0); loadG(1)
    e("s_barrier")
    stamp()
    for t in range(4): readA1(t)
    e("s_waitcnt lgkmcnt(0)")
    for r in range(16):
        e(f"v_dot2_f32_bf16 v{T+1+(r&1)}, v{V_RAW+r}, v{T}, v{T+1+(r&1)}")
        e(f"v_dot2_f32_bf16 v{T+3+(r&1)}, v{V_RAW+r}, v{V_RAW+r}, v{T+3+(r&1)}")
    e("s_nop 2")
    e(f"v_add_f32 v{T+1}, v{T+1}, v{T+2}")
    e(f"v_add_f32 v{T+2}, v{T+3}, v{T+4}")
    e(f"v_mov_b32 v{T+3}, v{T+1}")
    e(f"v_mov_b32 v{T+4}, v{T+2}")
    e("s_nop 1")
    e(f"v_permlane32_swap_b32 v{T+3}, v{T+1}")
    e(f"v_permlane32_swap_b32 v{T+4}, v{T+2}")
    e("s_nop 1")
    e(f"v_add_f32 v{V_X+2}, v{T+1}, v{T+3}")
    e(f"v_add_f32 v{V_X+3}, v{T+2}, v{T+4}")
    e(f"v_mul_f32 v{V_PIV}, 0x3c800000, v{V_X+2}")
    e("s_mov_b32 exec_hi, 0")
    if not nopub: g.vm(f"buffer_store_dwordx2 v[{V_X+2}:{V_X+3}], v{V_X}, s[28:31], s59 offen sc0 sc1")
    e("s_mov_b64 exec, -1")


    def norm_ops(t):
        c = t >> 2
        raw = rs(t)
        vf = V_VF + (t & 1) * 4
        greg = V_G + 2 * (c & 1) + ((t >> 1) & 1)
        groups = []
        for pp in range(2):
            o = []
            ps = (2 * pp, 2 * pp + 1)
            for p in ps:
                t0 = T + 2 * p
                o.append(f"v_lshlrev_b32 v{t0}, 16, v{raw+p}")
                o.append(f"v_and_b32 v{t0+1}, 0xffff0000, v{raw+p}")
            for p in ps:
                t0 = T + 2 * p
                if nopiv: continue
                o.append(f"v_sub_f32 v{t0}, v{t0}, v{V_PIV}")
                o.append(f"v_sub_f32 v{t0+1}, v{t0+1}, v{V_PIV}")
            for p in ps:
                t0 = T + 2 * p
                n0 = (t & 1) * 8 + 2 * p
                o.append(f"v_mul_f32_dpp v{t0}, v{greg}, v{t0} row_newbcast:{n0} row_mask:0xf bank_mask:0xf")
                o.append(f"v_mul_f32_dpp v{t0+1}, v{greg}, v{t0+1} row_newbcast:{n0+1} row_mask:0xf bank_mask:0xf")
            for p in ps:
                t0 = T + 2 * p
                o.append(f"v_cvt_pk_bf16_f32 v{vf+p}, v{t0}, v{t0+1}")
            hlf = len(o)//2
            groups.append(o[:hlf]); groups.append(o[hlf:])
        return groups

    def readB(t):
        c, s = t >> 2, t & 3
        slot = c % 3
        buf = A_BF + (t & 1) * 16
        for k in range(4):
            for h in range(2):
                if slot < 2:
                    e(f"ds_read_b64_tr_b16 a[{buf+4*k+2*h}:{buf+4*k+2*h+1}], v{V_BRD+k} offset:{slot*32768 + s*4096 + h*1024}")
                else:
                    e(f"ds_read_b64_tr_b16 a[{buf+4*k+2*h}:{buf+4*k+2*h+1}], v{V_BRD2+k} offset:{s*4096 + h*1024}")

    if prio == 1:
        e("s_cmp_ge_u32 s39, 4"); e("s_cbranch_scc0 L_noprio"); e("s_setprio 1"); g.lab("L_noprio")
    if prio == 2:
        e("s_setprio 2")
    def accreg(k):
        return f"v[{V_ACC+16*k}:{V_ACC+16*k+15}]" if k < 2 else f"a[{16*(k-2)}:{16*(k-2)+15}]"
    CC, SS = V_X, V_X+2
    SV = V_X + 4
    EA = 12
    for t in range(-1, 32):
        g.c(f"---- step {t}")
        loadG_next = None
        if (t + 1) % 4 == 0 and t + 1 <= 31:
            j = (t + 1) // 4
            if t == 3:
                e("s_waitcnt vmcnt(0) lgkmcnt(0)")
            elif t >= 0:
                e("s_waitcnt lgkmcnt(0)")
            e("s_barrier")
            if 1 <= j <= 6: loadG_next = j + 1
        else:
            e("s_waitcnt lgkmcnt(0)")
        if t in (-1, 7, 15, 23) and not est: stamp()
        groups = norm_ops(t + 1) if t + 1 <= 31 else [[], [], [], []]
        buf = A_BF + (t & 1) * 16
        vf = V_VF + (t & 1) * 4
        def mfma(k):
            if t >= 0:
                e(f"v_mfma_f32_32x32x16_bf16 {accreg(k)}, a[{buf+4*k}:{buf+4*k+3}], v[{vf}:{vf+3}], {accreg(k)}")
        order_k = (2, 3, 0, 1) if t == 31 else (0, 1, 2, 3)
        mfma(order_k[0])
        if t + 5 <= 31: readA1(t + 5)
        if t + 1 <= 31: readB(t + 1)
        for o in groups[0]: e(o)
        mfma(order_k[1])
        for o in groups[1]: e(o)
        mfma(order_k[2])
        for o in groups[2]: e(o)
        mfma(order_k[3])
        for o in groups[3]: e(o)
        if t == 24:
            e(f"v_and_b32 v{T}, 31, v{L}")
            e(f"v_lshrrev_b32 v{T+1}, 5, v{L}")
            e("s_lshl_b32 s46, s40, 9")
            e(f"s_add_u32 s46, s46, {ROWP}")
            e(f"v_lshl_add_u32 v{EA+1}, v{T}, 4, s46")
            e(f"v_lshl_add_u32 v{EA}, v{T+1}, 2, v{EA+1}")
            e("s_lshl_b32 s46, s41, 8")
            e(f"s_add_u32 s46, s46, {SARR}")
            e(f"v_lshl_add_u32 v{EA+2}, v{T}, 2, s46")
            e(f"v_lshl_add_u32 v{EA+2}, v{T+1}, 9, v{EA+2}")
        if loadG_next is not None: loadG(loadG_next)
        if t == 7 and not noflag:
            e("s_cmp_lg_u32 s39, 7")
            e("s_cbranch_scc1 L_noflag")
            srd(60, 14, 256)
            e("s_lshl_b32 s46, s36, 3")
            e("s_add_u32 s46, s46, s37")
            e(f"v_mov_b32 v{V_X}, s46")
            e(f"v_mov_b32 v{V_X+1}, 1")
            e("s_mov_b64 exec, 1")
            e(f"buffer_store_byte v{V_X+1}, v{V_X}, s[60:63], 0 offen sc0 sc1")
            e("s_mov_b64 exec, -1")
            g.lab("L_noflag")
        if t < 0: e("s_nop 1")

    g.c("---- epilogue")
    stamp()
    e(f"v_lshlrev_b32 v{T+7}, 4, v{L}")
    e("s_lshl_b32 s46, s40, 13")
    e("s_lshl_b32 s47, s41, 16")
    e("s_add_u32 s46, s46, s47")
    e(f"v_add_u32 v{T+8}, s46, v{T+7}")
    e("s_xor_b32 s46, s46, 0x10000")
    e(f"v_add_u32 v{T+9}, s46, v{T+7}")
    e(f"v_and_b32 v{T+4}, 31, v{L}")
    e(f"v_lshrrev_b32 v{T+6}, 5, v{L}")
    e("s_nop 1")
    for q in range(8):
        e(f"ds_write_b128 v{T+8}, a[{4*q}:{3+4*q}] offset:{q*1024}")
    e(f"v_and_b32 v{T+12}, 7, v{T+4}")
    e(f"v_xor_b32 v{T+12}, v{T+12}, v{T+6}")
    e(f"v_lshlrev_b32 v{T+12}, 4, v{T+12}")
    e(f"v_lshl_add_u32 v{T+12}, v{T+4}, 7, v{T+12}")
    e("s_add_u32 s46, s44, 4096")
    e(f"v_add_u32 v{T+12}, s46, v{T+12}")
    e(f"v_lshrrev_b32 v{T+13}, 3, v{L}")
    e(f"v_and_b32 v{T+14}, 7, v{L}")
    e(f"v_xor_b32 v{T+15}, v{T+14}, v{T+13}")
    e(f"v_lshlrev_b32 v{T+15}, 4, v{T+15}")
    e(f"v_lshl_add_u32 v{T+15}, v{T+13}, 7, v{T+15}")
    e(f"v_add_u32 v{T+15}, s46, v{T+15}")
    e(f"v_lshlrev_b32 v{T+14}, 4, v{T+14}")
    e(f"v_lshl_add_u32 v{T+13}, v{T+13}, 11, v{T+14}")
    for z in range(1, 4):
        e(f"v_xor_b32 v{T+z}, {z*32}, v{T+12}")
    e("s_lshl_b32 s47, s36, 18")
    e("s_lshl_b32 s48, s37, 8")
    e("s_add_u32 s47, s47, s48")
    e("s_lshl_b32 s48, s41, 7")
    e("s_add_u32 s47, s47, s48")
    e("s_lshl_b32 s48, s40, 16")
    e("s_add_u32 s47, s47, s48")
    e("s_waitcnt lgkmcnt(0)")
    if est: stamp()
    e("s_barrier")
    if est: stamp()
    P = 16
    e(f"ds_read_b32 v{CC}, v{EA}")
    e(f"ds_read_b64 v[{SS}:{SS+1}], v{EA+1} offset:8")
    for k in range(2):
        e(f"ds_read_b32 v{SV+2*k}, v{EA+2} offset:{k*128}")
        e(f"ds_read_b32 v{SV+2*k+1}, v{EA+2} offset:{k*128+1024}")
    for q in range(8):
        e(f"ds_read_b128 v[{P+4*q}:{P+3+4*q}], v{T+9} offset:{q*1024}")
    e("s_waitcnt lgkmcnt(8)")
    for k in range(2):
        e(f"v_mfma_f32_32x32x2_f32 {accreg(k)}, v{SV+2*k}, v{CC}, {accreg(k)}")
        e(f"v_mfma_f32_32x32x2_f32 {accreg(k)}, v{SV+2*k+1}, v{SS}, {accreg(k)}")
    e(f"v_mov_b32 v{SS}, v{SS+1}")
    e("s_nop 15")
    e("s_nop 2")
    O = 4
    for k in range(2):
        for q in range(4):
            r0 = V_ACC + 16*k + 4*q
            p0 = P + 16*k + 4*q
            e(f"s_waitcnt lgkmcnt({7 - (4*k+q) + (2*k + (q>>1)) if False else 0})" if (k == 0 and q == 0) else "")
            if pk:
                for j in (0, 2):
                    e(f"v_pk_add_f32 v[{p0+j}:{p0+j+1}], v[{p0+j}:{p0+j+1}], v[{r0+j}:{r0+j+1}]")
                for j in (0, 2):
                    e(f"v_pk_mul_f32 v[{p0+j}:{p0+j+1}], v[{p0+j}:{p0+j+1}], v[{SS}:{SS+1}]")
            else:
                for j in range(4):
                    e(f"v_add_f32 v{p0+j}, v{p0+j}, v{r0+j}")
                for j in range(4):
                    e(f"v_mul_f32 v{p0+j}, v{p0+j}, v{SS}")
            oo = O + (q & 1) * 2 + (q >> 1) * 4
            e(f"v_cvt_pk_bf16_f32 v{oo}, v{p0}, v{p0+1}")
            e(f"v_cvt_pk_bf16_f32 v{oo+1}, v{p0+2}, v{p0+3}")
            if q & 1:
                o4 = O + (q >> 1) * 4
                z = 2*k + (q >> 1)
                e("s_nop 1")
                e(f"v_permlane32_swap_b32 v{o4}, v{o4+2}")
                e(f"v_permlane32_swap_b32 v{o4+1}, v{o4+3}")
                e("s_nop 1")
                e(f"ds_write_b128 v{T+12 if z == 0 else T+z}, v[{o4}:{o4+3}]")
    e("s_waitcnt lgkmcnt(0)")
    if est: stamp(); e("s_waitcnt lgkmcnt(0)")
    for it in range(4):
        e(f"ds_read_b128 v[{P+4*it}:{P+3+4*it}], v{T+15} offset:{it*1024}")
    for it in range(4):
        e(f"s_waitcnt lgkmcnt({3-it})")
        if it: e(f"s_add_u32 s47, s47, {8*2048}")
        e(f"buffer_store_dwordx4 v[{P+4*it}:{P+3+4*it}], v{T+13}, s[32:35], s47 offen" + ["", " sc1", " nt", " sc0 sc1", " sc1 nt"][ost])
    if stamps:
        e("s_waitcnt vmcnt(0)")
        stamp()
        e("s_waitcnt lgkmcnt(0)")
        e("s_mov_b32 s30, 0x1000000")
        e("s_lshl_b32 s46, s2, 3")
        e("s_add_u32 s46, s46, s39")
        e("s_lshl_b32 s46, s46, 6")
        e("s_add_u32 s46, s46, 0x400000")
        e("v_mov_b32 v2, s46")
        for k in range(16):
            e(f"v_mov_b32 v{4+k}, s{80+k}")
        e(f"v_cmp_eq_u32 vcc, 0, v{L}")
        e("s_and_saveexec_b64 s[50:51], vcc")
        for k in range(4):
            e(f"buffer_store_dwordx4 v[{4+4*k}:{7+4*k}], v2, s[28:31], 0 offen offset:{16*k}")
        e("s_waitcnt vmcnt(0)")
    e("s_endpgm")

    g.lab("L_loader")
    g.nvm = 0
    if lprio: e(f"s_setprio {lprio}")
    OA0, OA1, OB = 2, 3, 4
    e("s_sub_u32 s40, s39, 8")
    e("s_lshr_b32 s41, s40, 1")
    e("s_and_b32 s42, s40, 1")
    e(f"v_lshrrev_b32 v{T}, 3, v{L}")
    e(f"v_lshlrev_b32 v{T}, 11, v{T}")
    e(f"v_and_b32 v{T+1}, 7, v{L}")
    e(f"v_lshrrev_b32 v{T+2}, 4, v{L}")
    e(f"v_xor_b32 v{T+1}, v{T+1}, v{T+2}")
    e(f"v_lshl_add_u32 v{OA0}, v{T+1}, 4, v{T}")
    e(f"v_xor_b32 v{OA1}, 64, v{OA0}")
    e(f"v_lshlrev_b32 v{T}, 11, v{T+2}")
    e(f"v_and_b32 v{T+1}, 15, v{L}")
    e(f"v_lshlrev_b32 v{T+3}, 2, v{T+2}")
    e(f"v_xor_b32 v{T+1}, v{T+1}, v{T+3}")
    e(f"v_lshl_add_u32 v{OB}, v{T+1}, 4, v{T}")
    e("s_lshl_b32 s43, s36, 18")
    e("s_lshl_b32 s46, s42, 17")
    e("s_add_u32 s43, s43, s46")
    e("s_lshl_b32 s46, s41, 10")
    e("s_add_u32 s43, s43, s46")
    e("s_lshl_b32 s44, s40, 14")
    e(f"s_add_u32 s44, s44, {A_BASE}")
    e("s_lshl_b32 s45, s37, 8")
    e("s_lshl_b32 s46, s41, 20")
    e("s_add_u32 s45, s45, s46")
    e("s_lshl_b32 s46, s42, 16")
    e("s_add_u32 s45, s45, s46")
    e("s_lshl_b32 s49, s40, 13")
    e("s_waitcnt lgkmcnt(0)")
    srd(16, 4, 8388608)
    srd(20, 10, 2097152)
    ids = {}
    def dmaA(c):
        e(f"s_add_u32 s47, s38, {c}")
        e("s_and_b32 s47, s47, 7")
        e("s_lshl_b32 s47, s47, 7")
        e("s_add_u32 s47, s47, s43")
        for u in range(2):
            for q in range(4):
                e(f"s_add_u32 m0, s44, {u*8192 + (c&1)*4096 + q*1024}")
                e(f"s_add_u32 s46, s47, {(32*u + 8*q)*2048}")
                ids[('A', c)] = g.vm(f"buffer_load_dwordx4 v{OA0 if q%2==0 else OA1}, s[16:19], s46 offen lds")
    def dmaB(c):
        e(f"s_add_u32 s47, s38, {c}")
        e("s_and_b32 s47, s47, 7")
        e("s_lshl_b32 s47, s47, 17")
        e("s_add_u32 s47, s47, s45")
        for q in range(8):
            e(f"s_add_u32 m0, s49, {(c%3)*32768 + q*1024}")
            e(f"s_add_u32 s46, s47, {4*q*2048}")
            ids[('B', c)] = g.vm(f"buffer_load_dwordx4 v{OB}, s[20:23], s46 offen lds")
    dmaA(0); dmaB(0)
    srd(24, 6, 2048)
    srd(28, 8, 2048)
    srd(32, 56, WS_BYTES)
    srd(60, 14, 256)
    GBF = 16
    e(f"v_lshrrev_b32 v{T}, 5, v{L}")
    e(f"v_lshlrev_b32 v{T}, 4, v{T}")
    e("s_lshl_b32 s46, s41, 10")
    e("s_lshl_b32 s47, s38, 7")
    e("s_add_u32 s46, s46, s47")
    e("s_mov_b32 s50, 0x55555555")
    e("s_mov_b32 s51, 0x55555555")
    e("s_mov_b64 exec, s[50:51]")
    for s in range(4):
        g.vm(f"buffer_load_dwordx4 v[{GBF+4*s}:{GBF+4*s+3}], v{T}, s[24:27], s46 offen offset:{32*s}")
    e("s_not_b64 exec, exec")
    for s in range(4):
        ids['GB'] = g.vm(f"buffer_load_dwordx4 v[{GBF+4*s}:{GBF+4*s+3}], v{T}, s[28:31], s46 offen offset:{32*s}")
    e("s_mov_b64 exec, -1")
    BR = 5
    e(f"v_lshrrev_b32 v{T+1}, 5, v{L}")
    e(f"v_bfe_u32 v{T+2}, v{L}, 2, 2")
    e(f"v_lshl_add_u32 v{T+3}, v{T+1}, 3, v{T+2}")
    e(f"v_lshlrev_b32 v{T+3}, 8, v{T+3}")
    e(f"v_bfe_u32 v{T+4}, v{L}, 4, 1")
    e(f"v_lshl_add_u32 v{T+3}, v{T+4}, 5, v{T+3}")
    e(f"v_and_b32 v{T+4}, 3, v{L}")
    e(f"v_lshl_add_u32 v{T+3}, v{T+4}, 3, v{T+3}")
    e("s_lshl_b32 s46, s41, 14")
    e(f"v_add_u32 v{T+3}, s46, v{T+3}")
    for k in range(2):
        e("s_lshl_b32 s46, s42, 1")
        e(f"s_add_u32 s46, s46, {k}")
        e(f"v_xor_b32 v{T+4}, s46, v{T+2}")
        e(f"v_lshl_add_u32 v{BR+k}, v{T+4}, 6, v{T+3}")
    for r in range(32):
        e(f"v_accvgpr_write_b32 a{r}, 0")
    e(f"v_and_b32 v{T+5}, 31, v{L}")
    e(f"v_lshlrev_b32 v7, 10, v{T+5}")
    e(f"v_lshl_add_u32 v7, v{T+1}, 4, v7")
    e("s_lshl_b32 s46, s58, 14")
    e("s_lshl_b32 s47, s38, 11")
    e("s_add_u32 s46, s46, s47")
    e("s_lshl_b32 s47, s41, 9")
    e("s_add_u32 s46, s46, s47")
    e("s_lshl_b32 s47, s42, 8")
    e("s_add_u32 s46, s46, s47")
    e(f"s_add_u32 s59, s46, {WS_S}")
    g.wait_vm(ids[('A', 0)])
    e("s_barrier")
    dmaA(1); dmaB(1); dmaB(2)
    g.wait_vm(ids[('A', 1)])
    e("s_barrier")
    dmaA(2)
    for s in range(4):
        for k in range(2):
            for h in range(2):
                r = 32 + 16 * s + 8 * 0 + 4 * k + 2 * h
                e(f"ds_read_b64_tr_b16 a[{32+8*s+4*k+2*h}:{33+8*s+4*k+2*h}], v{BR+k} offset:{s*4096 + h*1024}")
    e("s_waitcnt lgkmcnt(0)")
    for s in range(4):
        for k in range(2):
            e(f"v_mfma_f32_32x32x16_bf16 a[{16*k}:{16*k+15}], a[{32+8*s+4*k}:{35+8*s+4*k}], v[{GBF+4*s}:{GBF+4*s+3}], a[{16*k}:{16*k+15}]")
    e("s_nop 7"); e("s_nop 7")
    e(f"v_cmp_gt_u32 vcc, 2, v{T+5}")
    e("s_and_saveexec_b64 s[50:51], vcc")
    for k in range(2):
        for q in range(4):
            if not nopub: g.vm(f"buffer_store_dwordx4 a[{16*k+4*q}:{16*k+4*q+3}], v7, s[32:35], s59 offen offset:{k*128+q*32} sc0 sc1")
    e("s_mov_b64 exec, -1")
    IDX = 8
    S1, S2, SA, SB, PV, PA, PL = 9, 10, 11, 12, 13, 14, 15
    RR, CH = 64, 65
    e("s_lshl_b32 s46, s40, 6")
    e(f"v_add_u32 v{IDX}, s46, v{L}")
    e("s_lshr_b32 s46, s36, 3")
    e("s_lshl_b32 s46, s46, 6")
    e(f"v_lshl_add_u32 v{PA}, v{L}, 2, s46")
    e("s_mov_b32 s54, 0x01010101")
    def poll_issue():
        e("s_mov_b64 exec, 0xffff")
        e(f"buffer_load_dword v{PL}, v{PA}, s[60:63], 0 offen sc0 sc1")
        e("s_mov_b64 exec, -1")
    def poll_check():
        e("s_mov_b64 exec, 0xffff")
        e(f"v_cmp_ne_u32 vcc, s54, v{PL}")
        e("s_mov_b64 exec, -1")
    def pivot_load():
        e(f"v_lshrrev_b32 v{T}, 1, v{IDX}")
        e(f"v_lshlrev_b32 v{T}, 3, v{T}")
        e(f"v_and_b32 v{T+1}, 1, v{IDX}")
        e(f"v_lshl_add_u32 v{T}, v{T+1}, 13, v{T}")
        e("s_lshl_b32 s46, s36, 14")
        e("s_lshl_b32 s47, s38, 10")
        e("s_add_u32 s47, s46, s47")
        e(f"buffer_load_dword v{PV}, v{T}, s[32:35], s47 offen sc0 sc1")
    def gather_issue():
        pivot_load()
        for c in range(8):
            if c % 4 == 0 and c: e("s_add_u32 s46, s46, 4096")
            e(f"buffer_load_dwordx2 v[{16+2*c}:{17+2*c}], v{T}, s[32:35], s46 offen offset:{(c%4)*1024} sc0 sc1")
        e(f"v_lshlrev_b32 v{T+2}, 2, v{IDX}")
        e("s_lshl_b32 s47, s58, 14")
        e(f"s_add_u32 s47, s47, {WS_S}")
        for c in range(8):
            if c % 2 == 0 and c: e("s_add_u32 s47, s47, 4096")
            e(f"buffer_load_dword v{32+2*c}, v{T+2}, s[32:35], s47 offen offset:{(c%2)*2048} sc0 sc1")
            e(f"buffer_load_dword v{33+2*c}, v{T+2}, s[32:35], s47 offen offset:{(c%2)*2048+1024} sc0 sc1")
    def gather_sum():
        e(f"v_add_f32 v{S1}, v16, v18"); e(f"v_add_f32 v{S2}, v17, v19")
        for c in range(2, 8):
            e(f"v_add_f32 v{S1}, v{S1}, v{16+2*c}"); e(f"v_add_f32 v{S2}, v{S2}, v{17+2*c}")
        e(f"v_add_f32 v{SA}, v32, v34"); e(f"v_add_f32 v{SB}, v33, v35")
        for c in range(2, 8):
            e(f"v_add_f32 v{SA}, v{SA}, v{32+2*c}"); e(f"v_add_f32 v{SB}, v{SB}, v{33+2*c}")
    def final_math():
        e("s_nop 1")
        e(f"v_add_f32_dpp v{T+5}, v{S1}, v{S1} quad_perm:[1,0,3,2] row_mask:0xf bank_mask:0xf")
        e(f"v_add_f32_dpp v{T+6}, v{S2}, v{S2} quad_perm:[1,0,3,2] row_mask:0xf bank_mask:0xf")
        mean, var, t1 = T+5, T+6, T+7
        e(f"v_mul_f32 v{mean}, 0x3a800000, v{mean}")
        e(f"v_mul_f32 v{var}, 0x3a800000, v{var}")
        e(f"v_fma_f32 v{var}, -v{mean}, v{mean}, v{var}")
        e(f"v_max_f32 v{var}, 0, v{var}")
        e(f"v_cvt_pk_bf16_f32 v{t1}, v{mean}, v{var}")
        e(f"v_lshlrev_b32 v{mean}, 16, v{t1}")
        e(f"v_and_b32 v{var}, 0xffff0000, v{t1}")
        e(f"v_add_f32 v{var}, 0x3727c5ac, v{var}")
        e(f"v_cvt_pk_bf16_f32 v{t1}, v{var}, v{var}")
        e(f"v_lshlrev_b32 v{var}, 16, v{t1}")
        e(f"v_sqrt_f32 v{var}, v{var}")
        e("s_nop 0")
        e(f"v_cvt_pk_bf16_f32 v{t1}, v{var}, v{var}")
        e(f"v_lshlrev_b32 v{var}, 16, v{t1}")
        e(f"v_rcp_f32 v{RR+3}, v{var}")
        e(f"v_mov_b32 v{RR+2}, v{var}")
        e(f"v_mul_f32 v{CH}, 0x3c800000, v{PV}")
        e(f"v_sub_f32 v{CH}, v{CH}, v{mean}")
    def params_write():
        e(f"v_lshlrev_b32 v{T+2}, 2, v{IDX}")
        e(f"v_add_u32 v{T+2}, {SARR}, v{T+2}")
        e(f"ds_write_b32 v{T+2}, v{SA}")
        e(f"ds_write_b32 v{T+2}, v{SB} offset:1024")
        e(f"v_lshrrev_b32 v{T}, 1, v{IDX}")
        e(f"v_lshlrev_b32 v{T}, 4, v{T}")
        e(f"v_add_u32 v{T}, {ROWP}, v{T}")
        e(f"v_and_b32 v{T+1}, 1, v{IDX}")
        e(f"v_lshl_add_u32 v{T+1}, v{T+1}, 2, v{T}")
        e(f"ds_write_b64 v{T}, v[{RR+2}:{RR+3}] offset:8")
        e(f"ds_write_b32 v{T+1}, v{CH}")
    e("s_mov_b32 s53, 0")
    for j in range(1, 8):
        need = [ids[('B', j)]]
        if j + 1 <= 7: need.append(ids[('A', j + 1)])
        if j == 6: e("s_waitcnt vmcnt(0)")
        elif j < 6: g.wait_vm(max(need))
        e("s_barrier")
        if j + 2 <= 7:
            dmaA(j + 2); dmaB(j + 2)
        if j == 5 and not force_fb:
            poll_issue()
        if j == 6 and not force_fb:
            poll_check()
            e("s_cbranch_vccnz L_early_no")
            e("s_mov_b32 s53, 1")
            gather_issue()
            g.lab("L_early_no")
    e("s_cmp_lg_u32 s53, 0")
    e("s_cbranch_scc1 L_gdone")
    e(f"s_mov_b32 s52, {0 if force_fb==1 else 40000}")
    g.lab("L_poll")
    poll_issue()
    e("s_waitcnt vmcnt(0)")
    poll_check()
    if force_fb != 1:
        e("s_cbranch_vccz L_gather")
    e("s_cmp_eq_u32 s52, 0")
    e("s_cbranch_scc1 L_fallback")
    e("s_sub_u32 s52, s52, 1")
    e("s_sleep 2")
    e("s_branch L_poll")
    g.lab("L_gather")
    gather_issue()
    g.lab("L_gdone")
    e("s_waitcnt vmcnt(0)")
    gather_sum()
    g.lab("L_final")
    final_math()
    params_write()
    e("s_waitcnt vmcnt(0) lgkmcnt(0)")
    e("s_barrier")
    e("s_endpgm")

    g.lab("L_fallback")
    pivot_load()
    e(f"v_lshrrev_b32 v{T}, 1, v{IDX}")
    e(f"v_lshlrev_b32 v{T}, 11, v{T}")
    e(f"v_and_b32 v{T+1}, 1, v{IDX}")
    e(f"v_lshl_add_u32 v{T}, v{T+1}, 10, v{T}")
    e("s_lshl_b32 s46, s36, 18")
    e(f"v_mov_b32 v{S1}, 0"); e(f"v_mov_b32 v{S2}, 0"); e(f"v_mov_b32 v{SA}, 0"); e(f"v_mov_b32 v{SB}, 0")
    e(f"v_mov_b32 v{T+8}, 0x3f803f80")
    e("s_mov_b32 s52, 64")
    g.lab("L_fb1")
    e(f"buffer_load_dwordx4 v[16:19], v{T}, s[16:19], s46 offen")
    e("s_waitcnt vmcnt(0)")
    for r in range(4):
        e(f"v_dot2_f32_bf16 v{S1}, v{16+r}, v{T+8}, v{S1}")
        e(f"v_dot2_f32_bf16 v{S2}, v{16+r}, v{16+r}, v{S2}")
    e("s_add_u32 s46, s46, 16")
    e("s_sub_u32 s52, s52, 1")
    e("s_cmp_lg_u32 s52, 0")
    e("s_cbranch_scc1 L_fb1")
    e(f"v_lshrrev_b32 v{T+1}, 7, v{IDX}")
    e(f"v_and_b32 v{T}, 127, v{IDX}")
    e(f"v_lshlrev_b32 v{T}, 1, v{T}")
    e(f"v_lshl_add_u32 v{T}, v{T+1}, 20, v{T}")
    e(f"v_lshlrev_b32 v{T+1}, 10, v{T+1}")
    e("s_lshl_b32 s46, s37, 8")
    e("s_mov_b32 s47, 0")
    e("s_mov_b32 s52, 512")
    g.lab("L_fb2")
    e(f"buffer_load_ushort v16, v{T}, s[20:23], s46 offen")
    e(f"buffer_load_ushort v17, v{T+1}, s[24:27], s47 offen")
    e(f"buffer_load_ushort v18, v{T+1}, s[28:31], s47 offen")
    e("s_waitcnt vmcnt(0)")
    e("v_lshlrev_b32 v16, 16, v16"); e("v_lshlrev_b32 v17, 16, v17"); e("v_lshlrev_b32 v18, 16, v18")
    e(f"v_fmac_f32 v{SA}, v16, v17")
    e(f"v_fmac_f32 v{SB}, v16, v18")
    e("s_add_u32 s46, s46, 2048")
    e("s_add_u32 s47, s47, 2")
    e("s_sub_u32 s52, s52, 1")
    e("s_cmp_lg_u32 s52, 0")
    e("s_cbranch_scc1 L_fb2")
    e("s_branch L_final")
    g.lab("L_end")
    e("s_endpgm")

    out = HDR
    out += "; Override launch geometry by editing the next line.\n"
    out += f"; @launch grid=(256,1,1) block=(768,1,1) lds={LDS_BYTES}\n"
    out += '.amdgcn_target "amdgcn-amd-amdhsa--gfx950"\n.text\n'
    out += f".globl {NAME}\n.p2align 8\n.type {NAME},@function\n{NAME}:\n"
    out += "\n".join(x for x in g.l if x is not None and x.strip()) + "\n"
    out += f""".section .rodata,"a"
.p2align 6
.amdhsa_kernel {NAME}
  .amdhsa_next_free_vgpr {NV+NA}
  .amdhsa_next_free_sgpr 96
  .amdhsa_accum_offset {NV}
  .amdhsa_group_segment_fixed_size 0
  .amdhsa_kernarg_size 56
  .amdhsa_user_sgpr_count 2
  .amdhsa_user_sgpr_kernarg_segment_ptr 1
  .amdhsa_system_sgpr_workgroup_id_x 1
.end_amdhsa_kernel
"""
    if sc == 1: out = out.replace(' sc0 sc1', ' sc1')
    return out

if __name__ == '__main__':
    kw = {}
    for a in sys.argv[2:]:
        k, v = a.split('='); kw[k] = int(v)
    open(sys.argv[1], 'w').write(gen(**kw))
```

```python
import sys

NAME = "standalone__layernorm_linear__sampling_kernel"
HDR = open('standalone__layernorm_linear__sampling.s.ref').read().split('; Override launch')[0]

A_BASE = 98304
LDS_BYTES = 163840
ROWP = A_BASE
SARR = A_BASE + 2048
PIVX = A_BASE + 8192
WS_S = 1 << 20
WS_F = (1 << 20) + (1 << 19)
WS_BYTES = 2 << 20

NV, NA = 104, 64
V_LANE, V_PIV, V_GOFF = 1, 2, 3
V_ARD, V_BRD, V_BRD2, V_G, V_RAW, V_VF, V_T, V_X, V_ACC = 4, 8, 12, 16, 20, 40, 48, 64, 72
A_BF = 32

class G:
    def __init__(self):
        self.l = []; self.nvm = 0
    def e(self, s): self.l.append("    " + s)
    def lab(self, s): self.l.append(s + ":")
    def c(self, s): self.l.append("    ; " + s)
    def vm(self, s):
        self.e(s); self.nvm += 1; return self.nvm
    def wait_vm(self, idx, extra=""):
        n = self.nvm - idx
        assert 0 <= n <= 63, n
        self.e(f"s_waitcnt vmcnt({n}){extra}")

def gen(stamps=0, force_fb=0, pk=1, early=0, ost=1, fl=0, fast=1):
    g = G(); e = g.e
    nst = [0]
    def stamp():
        if stamps:
            e(f"s_{'memtime' if stamps==2 else 'memrealtime'} s[{80+2*nst[0]}:{81+2*nst[0]}]"); nst[0] += 1
    def srd(d, b, n):
        e(f"s_mov_b32 s{d}, s{b}")
        e(f"s_and_b32 s{d+1}, s{b+1}, 0xffff")
        e(f"s_mov_b32 s{d+2}, {n}")
        e(f"s_mov_b32 s{d+3}, 0x00020000")
    L = V_LANE; T = V_T
    e("s_cmp_ge_u32 s2, 256")
    e("s_cbranch_scc1 L_end")
    stamp()
    e("s_load_dwordx8 s[4:11], s[0:1], 0")
    e("s_load_dwordx4 s[12:15], s[0:1], 32")
    e("s_load_dwordx2 s[56:57], s[0:1], 48")
    e(f"v_lshrrev_b32 v{T}, 6, v0")
    e(f"v_and_b32 v{L}, 63, v0")
    e(f"v_readfirstlane_b32 s39, v{T}")
    e("s_and_b32 s46, s2, 7")
    e("s_lshr_b32 s47, s2, 3")
    e("s_lshr_b32 s38, s47, 3")
    e("s_lshl_b32 s36, s46, 2")
    e("s_add_u32 s36, s36, s38")
    e("s_and_b32 s37, s47, 7")
    e("s_lshl_b32 s58, s38, 1")
    e("s_add_u32 s58, s58, s37")
    e("s_and_b32 s48, s46, 1")
    e("s_add_u32 s58, s58, s48")
    e("s_and_b32 s58, s58, 7")
    e("s_lshr_b32 s42, s46, 1")
    e("s_cmp_ge_u32 s39, 8")
    e("s_cbranch_scc1 L_helpers")

    e("s_and_b32 s40, s39, 3")
    e("s_lshr_b32 s41, s39, 2")
    e("s_lshl_b32 s44, s39, 13")
    e(f"s_add_u32 s44, s44, {A_BASE}")
    e(f"v_bfe_u32 v{T+2}, v{L}, 2, 2")
    e(f"v_lshlrev_b32 v{T+2}, 5, v{T+2}")
    e(f"v_lshrrev_b32 v{T+1}, 5, v{L}")
    e(f"v_lshl_add_u32 v{T+2}, v{T+1}, 4, v{T+2}")
    e(f"v_and_b32 v{T+3}, 3, v{L}")
    e(f"v_lshl_add_u32 v{V_GOFF}, v{T+3}, 2, v{T+2}")
    e("s_lshl_b32 s45, s41, 10")
    e("s_waitcnt lgkmcnt(0)")
    srd(24, 6, 2048)
    GP = T + 8
    for c in range(8):
        e(f"s_add_u32 s46, s58, {c}")
        e("s_and_b32 s46, s46, 7")
        e("s_lshl_b32 s46, s46, 7")
        e("s_add_u32 s46, s46, s45")
        g.vm(f"buffer_load_dword v{GP+c}, v{V_GOFF}, s[24:27], s46 offen")
    def loadG(c):
        e(f"v_lshlrev_b32 v{V_G+2*(c&1)}, 16, v{GP+c}")
        e(f"v_and_b32 v{V_G+2*(c&1)+1}, 0xffff0000, v{GP+c}")
    srd(32, 12, 8388608)
    srd(28, 56, WS_BYTES)
    e(f"v_and_b32 v{T}, 31, v{L}")
    e(f"v_bfe_u32 v{T+2}, v{L}, 1, 3")
    e(f"v_xor_b32 v{T+2}, v{T+2}, v{T+1}")
    e(f"v_lshlrev_b32 v{T+3}, 7, v{T}")
    e(f"v_lshl_add_u32 v{T+3}, v{T+2}, 4, v{T+3}")
    e(f"v_add_u32 v{V_ARD}, s44, v{T+3}")
    for s in range(1, 4):
        e(f"v_xor_b32 v{V_ARD+s}, {32*s}, v{V_ARD}")
    e(f"v_bfe_u32 v{T+2}, v{L}, 2, 2")
    e(f"v_lshl_add_u32 v{T+3}, v{T+1}, 3, v{T+2}")
    e(f"v_lshlrev_b32 v{T+3}, 8, v{T+3}")
    e(f"v_bfe_u32 v{T+4}, v{L}, 4, 1")
    e(f"v_lshl_add_u32 v{T+3}, v{T+4}, 5, v{T+3}")
    e(f"v_and_b32 v{T+4}, 3, v{L}")
    e(f"v_lshl_add_u32 v{T+3}, v{T+4}, 3, v{T+3}")
    e("s_lshl_b32 s46, s41, 14")
    e(f"v_add_u32 v{T+3}, s46, v{T+3}")
    e("s_lshl_b32 s49, s41, 1")
    for k in range(4):
        e(f"s_xor_b32 s46, s49, {k}")
        e(f"v_xor_b32 v{T+4}, s46, v{T+2}")
        e(f"v_lshl_add_u32 v{V_BRD+k}, v{T+4}, 6, v{T+3}")
        e(f"v_add_u32 v{V_BRD2+k}, 0x10000, v{V_BRD+k}")
    for r in range(32):
        e(f"v_accvgpr_write_b32 a{r}, 0")
        e(f"v_mov_b32 v{V_ACC+r}, 0")
    e(f"v_lshlrev_b32 v{V_X}, 3, v{T}")
    e("s_lshl_b32 s46, s36, 14")
    e("s_lshl_b32 s47, s41, 3")
    e("s_add_u32 s47, s47, s58")
    e("s_lshl_b32 s47, s47, 10")
    e("s_add_u32 s46, s46, s47")
    e("s_lshl_b32 s47, s40, 8")
    e("s_add_u32 s59, s46, s47")
    e(f"v_mov_b32 v{T}, 0x3f803f80")
    for k in range(4):
        e(f"v_mov_b32 v{T+1+k}, 0")

    rs = lambda t: V_RAW + 4 * (t % 5)
    def readA1(t):
        c, s = t >> 2, t & 3
        e(f"ds_read_b128 v[{rs(t)}:{rs(t)+3}], v{V_ARD+s} offset:{(c&1)*4096}")

    e("s_barrier")
    stamp()
    for t in range(4): readA1(t)
    e("s_waitcnt lgkmcnt(0)")
    for r in range(16):
        e(f"v_dot2_f32_bf16 v{T+1+(r&1)}, v{V_RAW+r}, v{T}, v{T+1+(r&1)}")
        e(f"v_dot2_f32_bf16 v{T+3+(r&1)}, v{V_RAW+r}, v{V_RAW+r}, v{T+3+(r&1)}")
    e("s_waitcnt vmcnt(0)")
    loadG(0); loadG(1)
    e(f"v_add_f32 v{T+1}, v{T+1}, v{T+2}")
    e(f"v_add_f32 v{T+2}, v{T+3}, v{T+4}")
    e(f"v_mov_b32 v{T+3}, v{T+1}")
    e(f"v_mov_b32 v{T+4}, v{T+2}")
    e("s_nop 1")
    e(f"v_permlane32_swap_b32 v{T+3}, v{T+1}")
    e(f"v_permlane32_swap_b32 v{T+4}, v{T+2}")
    e("s_nop 1")
    e(f"v_add_f32 v{V_X+2}, v{T+1}, v{T+3}")
    e(f"v_add_f32 v{V_X+3}, v{T+2}, v{T+4}")
    e(f"v_mul_f32 v{V_PIV}, 0x3c800000, v{V_X+2}")
    e("s_mov_b32 exec_hi, 0")
    e(f"buffer_store_dwordx2 v[{V_X+2}:{V_X+3}], v{V_X}, s[28:31], s59 offen sc0 sc1")
    e("s_mov_b64 exec, -1")

    def norm_ops(t, nopiv=False):
        c, s = t >> 2, t & 3
        raw = rs(t)
        vf = V_VF + (t & 1) * 4
        glo = V_G + 2 * (c & 1)
        groups = []
        for pp in range(2):
            o = []
            ps = (2 * pp, 2 * pp + 1)
            for p in ps:
                t0 = T + 2 * p
                o.append(f"v_lshlrev_b32 v{t0}, 16, v{raw+p}")
                o.append(f"v_and_b32 v{t0+1}, 0xffff0000, v{raw+p}")
            for p in ps:
                t0 = T + 2 * p
                if nopiv: continue
                o.append(f"v_sub_f32 v{t0}, v{t0}, v{V_PIV}")
                o.append(f"v_sub_f32 v{t0+1}, v{t0+1}, v{V_PIV}")
            for p in ps:
                t0 = T + 2 * p
                o.append(f"v_mul_f32_dpp v{t0}, v{glo}, v{t0} row_newbcast:{4*s+p} row_mask:0xf bank_mask:0xf")
                o.append(f"v_mul_f32_dpp v{t0+1}, v{glo+1}, v{t0+1} row_newbcast:{4*s+p} row_mask:0xf bank_mask:0xf")
            for p in ps:
                t0 = T + 2 * p
                o.append(f"v_cvt_pk_bf16_f32 v{vf+p}, v{t0}, v{t0+1}")
            hl = len(o) // 2
            groups.append(o[:hl]); groups.append(o[hl:])
        return groups

    def readB(t):
        c, s = t >> 2, t & 3
        slot = c % 3
        buf = A_BF + (t & 1) * 16
        for k in range(4):
            for h in range(2):
                if slot < 2:
                    e(f"ds_read_b64_tr_b16 a[{buf+4*k+2*h}:{buf+4*k+2*h+1}], v{V_BRD+k} offset:{slot*32768 + s*4096 + h*1024}")
                else:
                    e(f"ds_read_b64_tr_b16 a[{buf+4*k+2*h}:{buf+4*k+2*h+1}], v{V_BRD2+k} offset:{s*4096 + h*1024}")

    def accreg(k):
        return f"v[{V_ACC+16*k}:{V_ACC+16*k+15}]" if k < 2 else f"a[{16*(k-2)}:{16*(k-2)+15}]"
    EA = 12
    def mainloop(nopiv):
        for t in range(-1, 32):
            g.c(f"---- step {t}")
            loadG_next = None
            if t == 7: e("s_waitcnt vmcnt(0) lgkmcnt(0)")
            elif t >= 0: e("s_waitcnt lgkmcnt(0)")
            if (t + 1) % 4 == 0 and t + 1 <= 31:
                j = (t + 1) // 4
                e("s_barrier")
                if 1 <= j <= 6: loadG_next = j + 1
            if t in (-1, 7, 15, 23): stamp()
            groups = norm_ops(t + 1, nopiv) if t + 1 <= 31 else [[], [], [], []]
            buf = A_BF + (t & 1) * 16
            vf = V_VF + (t & 1) * 4
            def mfma(k):
                if t >= 0:
                    e(f"v_mfma_f32_32x32x16_bf16 {accreg(k)}, a[{buf+4*k}:{buf+4*k+3}], v[{vf}:{vf+3}], {accreg(k)}")
            ok = (2, 3, 0, 1) if t == 31 else (0, 1, 2, 3)
            mfma(ok[0])
            if t + 5 <= 31: readA1(t + 5)
            if t + 1 <= 31: readB(t + 1)
            for o in groups[0]: e(o)
            mfma(ok[1])
            for o in groups[1]: e(o)
            mfma(ok[2])
            for o in groups[2]: e(o)
            mfma(ok[3])
            for o in groups[3]: e(o)
            if t == 24:
                e(f"v_and_b32 v{T}, 31, v{L}")
                e(f"v_lshrrev_b32 v{T+1}, 5, v{L}")
                e("s_lshl_b32 s46, s40, 9")
                e(f"s_add_u32 s46, s46, {ROWP}")
                e(f"v_lshl_add_u32 v{EA+1}, v{T}, 4, s46")
                e("s_lshl_b32 s46, s40, 7")
                e(f"s_add_u32 s46, s46, {PIVX}")
                e(f"v_lshl_add_u32 v{EA}, v{T}, 2, s46")
                e("s_lshl_b32 s47, s41, 9")
                e(f"v_add_u32 v{EA+3}, s47, v{EA}")
                e(f"v_lshl_add_u32 v{EA}, v{T+1}, 9, v{EA}")
                e("s_lshl_b32 s46, s41, 8")
                e(f"s_add_u32 s46, s46, {SARR}")
                e(f"v_lshl_add_u32 v{EA+2}, v{T}, 2, s46")
                e(f"v_lshl_add_u32 v{EA+2}, v{T+1}, 9, v{EA+2}")
            if t == 28:
                e(f"ds_write_b32 v{EA+3}, v{V_PIV}")
            if loadG_next is not None: loadG(loadG_next)
            if t < 0: e("s_nop 1")


    if fast:
        e(f"v_mul_f32 v{T}, v{V_X+2}, v{V_X+2}")
        e(f"v_mul_f32 v{T+1}, 0x42000000, v{V_X+3}")
        e(f"v_cmp_nle_f32 vcc, v{T}, v{T+1}")
        e("s_cbranch_vccnz L_slowloop" if fast == 1 else "s_branch L_slowloop")
        e(f"v_mov_b32 v{V_PIV}, 0")
        n0 = nst[0]
        mainloop(True)
        e("s_branch L_epi")
        g.lab("L_slowloop")
        nst[0] = n0
        mainloop(False)
        g.lab("L_epi")
    else:
        mainloop(False)
    g.c("---- epilogue")
    stamp()
    e(f"v_lshlrev_b32 v{T+7}, 4, v{L}")
    e("s_lshl_b32 s46, s40, 13")
    e("s_lshl_b32 s47, s41, 16")
    e("s_add_u32 s46, s46, s47")
    e(f"v_add_u32 v{T+8}, s46, v{T+7}")
    e("s_xor_b32 s46, s46, 0x10000")
    e(f"v_add_u32 v{T+9}, s46, v{T+7}")
    e(f"v_and_b32 v{T+4}, 31, v{L}")
    e(f"v_lshrrev_b32 v{T+6}, 5, v{L}")
    e("s_nop 1")
    for q in range(8):
        e(f"ds_write_b128 v{T+8}, a[{4*q}:{3+4*q}] offset:{q*1024}")
    e(f"v_and_b32 v{T+12}, 7, v{T+4}")
    e(f"v_xor_b32 v{T+12}, v{T+12}, v{T+6}")
    e(f"v_lshlrev_b32 v{T+12}, 4, v{T+12}")
    e(f"v_lshl_add_u32 v{T+12}, v{T+4}, 7, v{T+12}")
    e("s_add_u32 s46, s44, 4096")
    e(f"v_add_u32 v{T+12}, s46, v{T+12}")
    e(f"v_lshrrev_b32 v{T+13}, 3, v{L}")
    e(f"v_and_b32 v{T+14}, 7, v{L}")
    e(f"v_xor_b32 v{T+15}, v{T+14}, v{T+13}")
    e(f"v_lshlrev_b32 v{T+15}, 4, v{T+15}")
    e(f"v_lshl_add_u32 v{T+15}, v{T+13}, 7, v{T+15}")
    e(f"v_add_u32 v{T+15}, s46, v{T+15}")
    e(f"v_lshlrev_b32 v{T+14}, 4, v{T+14}")
    e(f"v_lshl_add_u32 v{T+13}, v{T+13}, 11, v{T+14}")
    for z in range(1, 4):
        e(f"v_xor_b32 v{T+z}, {z*32}, v{T+12}")
    e("s_lshl_b32 s47, s36, 18")
    e("s_lshl_b32 s48, s37, 8")
    e("s_add_u32 s47, s47, s48")
    e("s_lshl_b32 s48, s41, 7")
    e("s_add_u32 s47, s47, s48")
    e("s_lshl_b32 s48, s40, 16")
    e("s_add_u32 s47, s47, s48")
    e("s_waitcnt lgkmcnt(0)")
    e("s_barrier")
    P = 16
    RP = V_X; SV = V_X + 4; CC = 3
    e(f"ds_read_b32 v{CC}, v{EA}")
    e(f"ds_read_b128 v[{RP}:{RP+3}], v{EA+1}")
    for k in range(2):
        e(f"ds_read_b32 v{SV+2*k}, v{EA+2} offset:{k*128}")
        e(f"ds_read_b32 v{SV+2*k+1}, v{EA+2} offset:{k*128+1024}")
    for q in range(8):
        e(f"ds_read_b128 v[{P+4*q}:{P+3+4*q}], v{T+9} offset:{q*1024}")
    e("s_waitcnt lgkmcnt(8)")
    e(f"v_sub_f32 v{CC}, v{CC}, v{RP}")
    e(f"v_mov_b32 v{RP+3}, v{RP+2}")
    e("s_nop 0")
    for k in range(2):
        e(f"v_mfma_f32_32x32x2_f32 {accreg(k)}, v{SV+2*k+1}, v{RP+1}, {accreg(k)}")
        e(f"v_mfma_f32_32x32x2_f32 {accreg(k)}, v{SV+2*k}, v{CC}, {accreg(k)}")
    e("s_nop 15")
    e("s_nop 2")
    e("s_waitcnt lgkmcnt(0)")
    O = 4
    for k in range(2):
        for q in range(4):
            r0 = V_ACC + 16*k + 4*q
            p0 = P + 16*k + 4*q
            if pk:
                for j in (0, 2):
                    e(f"v_pk_add_f32 v[{p0+j}:{p0+j+1}], v[{p0+j}:{p0+j+1}], v[{r0+j}:{r0+j+1}]")
                for j in (0, 2):
                    e(f"v_pk_mul_f32 v[{p0+j}:{p0+j+1}], v[{p0+j}:{p0+j+1}], v[{RP+2}:{RP+3}]")
            else:
                for j in range(4): e(f"v_add_f32 v{p0+j}, v{p0+j}, v{r0+j}")
                for j in range(4): e(f"v_mul_f32 v{p0+j}, v{p0+j}, v{RP+2}")
            oo = O + (q & 1) * 2 + (q >> 1) * 4
            e(f"v_cvt_pk_bf16_f32 v{oo}, v{p0}, v{p0+1}")
            e(f"v_cvt_pk_bf16_f32 v{oo+1}, v{p0+2}, v{p0+3}")
            if q & 1:
                o4 = O + (q >> 1) * 4
                z = 2*k + (q >> 1)
                e("s_nop 1")
                e(f"v_permlane32_swap_b32 v{o4}, v{o4+2}")
                e(f"v_permlane32_swap_b32 v{o4+1}, v{o4+3}")
                e("s_nop 1")
                e(f"ds_write_b128 v{T+12 if z == 0 else T+z}, v[{o4}:{o4+3}]")
    e("s_waitcnt lgkmcnt(0)")
    for it in range(4):
        e(f"ds_read_b128 v[{P+4*it}:{P+3+4*it}], v{T+15} offset:{it*1024}")
    for it in range(4):
        e(f"s_waitcnt lgkmcnt({3-it})")
        if it: e(f"s_add_u32 s47, s47, {8*2048}")
        e(f"buffer_store_dwordx4 v[{P+4*it}:{P+3+4*it}], v{T+13}, s[32:35], s47 offen" + ["", " sc1"][ost])
    if stamps:
        e("s_waitcnt vmcnt(0)")
        stamp()
        e("s_waitcnt lgkmcnt(0)")
        e("s_mov_b32 s30, 0x1000000")
        e("s_lshl_b32 s46, s2, 3")
        e("s_add_u32 s46, s46, s39")
        e("s_lshl_b32 s46, s46, 6")
        e("s_add_u32 s46, s46, 0x400000")
        e("v_mov_b32 v2, s46")
        for k in range(16):
            e(f"v_mov_b32 v{4+k}, s{80+k}")
        e(f"v_cmp_eq_u32 vcc, 0, v{L}")
        e("s_and_saveexec_b64 s[50:51], vcc")
        for k in range(4):
            e(f"buffer_store_dwordx4 v[{4+4*k}:{7+4*k}], v2, s[28:31], 0 offen offset:{16*k}")
        e("s_waitcnt vmcnt(0)")
    e("s_endpgm")

    g.lab("L_helpers")
    OA0, OA1, OB = 2, 3, 4
    e(f"v_lshrrev_b32 v{T}, 3, v{L}")
    e(f"v_lshlrev_b32 v{T}, 11, v{T}")
    e(f"v_and_b32 v{T+1}, 7, v{L}")
    e(f"v_lshrrev_b32 v{T+2}, 4, v{L}")
    e(f"v_xor_b32 v{T+1}, v{T+1}, v{T+2}")
    e(f"v_lshl_add_u32 v{OA0}, v{T+1}, 4, v{T}")
    e(f"v_xor_b32 v{OA1}, 64, v{OA0}")
    e(f"v_lshlrev_b32 v{T}, 11, v{T+2}")
    e(f"v_and_b32 v{T+1}, 15, v{L}")
    e(f"v_lshlrev_b32 v{T+3}, 2, v{T+2}")
    e(f"v_xor_b32 v{T+1}, v{T+1}, v{T+3}")
    e(f"v_lshl_add_u32 v{OB}, v{T+1}, 4, v{T}")
    e("s_lshl_b32 s43, s36, 18")
    e("s_lshl_b32 s45, s37, 8")
    e("s_waitcnt lgkmcnt(0)")
    srd(16, 4, 8388608)
    srd(20, 10, 2097152)
    e("s_cmp_eq_u32 s39, 11")
    e("s_cbranch_scc1 L_aux")
    e("s_cmp_eq_u32 s39, 10")
    e("s_cbranch_scc1 L_load2")
    e("s_sub_u32 s40, s39, 8")
    e("s_lshl_b32 s46, s40, 10")
    e("s_add_u32 s43, s43, s46")
    e("s_lshl_b32 s46, s40, 20")
    e("s_add_u32 s45, s45, s46")
    e("s_lshl_b32 s44, s40, 15")
    e(f"s_add_u32 s44, s44, {A_BASE}")
    e("s_lshl_b32 s49, s40, 14")

    def loader(kind):
        g.nvm = 0
        ids = {}
        def dmaA(c):
            if kind != 0: return
            e(f"s_add_u32 s47, s58, {c}")
            e("s_and_b32 s47, s47, 7")
            e("s_lshl_b32 s47, s47, 7")
            e("s_add_u32 s47, s47, s43")
            for i in range(4):
                for q in range(4):
                    e(f"s_add_u32 m0, s44, {i*8192 + (c&1)*4096 + q*1024}")
                    e(f"s_add_u32 s46, s47, {(32*i + 8*q)*2048}")
                    ids[('A', c)] = g.vm(f"buffer_load_dwordx4 v{OA0 if q%2==0 else OA1}, s[16:19], s46 offen lds")
        def dmaB(c):
            e(f"s_add_u32 s47, s58, {c}")
            e("s_and_b32 s47, s47, 7")
            e("s_lshl_b32 s47, s47, 17")
            e("s_add_u32 s47, s47, s45")
            if kind == 0:
                for q in range(8):
                    e(f"s_add_u32 m0, s49, {(c%3)*32768 + q*1024}")
                    e(f"s_add_u32 s46, s47, {(4*q)*2048}")
                    ids[('B', c)] = g.vm(f"buffer_load_dwordx4 v{OB}, s[20:23], s46 offen lds")
            else:
                for h in range(2):
                    for q in range(8, 16):
                        e(f"s_mov_b32 m0, {(c%3)*32768 + h*16384 + q*1024}")
                        e(f"s_add_u32 s46, s47, {(h*512 + 4*q)*2048}")
                        ids[('B', c)] = g.vm(f"buffer_load_dwordx4 v{OB}, s[20:23], s46 offen lds")
        def need(*keys):
            ks = [ids[k] for k in keys if k in ids]
            if ks: g.wait_vm(max(ks))
        dmaA(0); dmaB(0)
        if early: dmaA(1); dmaB(1); dmaB(2)
        need(('A', 0))
        e("s_barrier")
        if not early: dmaA(1); dmaB(1); dmaB(2)
        need(('B', 0), ('A', 1))
        e("s_barrier")
        dmaA(2)
        need(('B', 1), ('A', 2))
        e("s_barrier")
        dmaA(3); dmaB(3)
        need(('B', 2), ('A', 3))
        e("s_barrier")
        for j in range(2, 7):
            if j + 2 <= 7:
                dmaA(j + 2); dmaB(j + 2)
            if j == 2 and ((fl == 1 and kind == 1) or (fl == 2 and kind == 0)):
                if fl == 2:
                    e("s_cmp_lg_u32 s39, 9"); e("s_cbranch_scc1 L_nofl")
                srd(60, 14, 256)
                e("s_lshl_b32 s46, s36, 3")
                e("s_add_u32 s46, s46, s37")
                e(f"v_mov_b32 v{T}, s46")
                e(f"v_mov_b32 v{T+1}, 1")
                e("s_mov_b64 exec, 1")
                e(f"buffer_store_byte v{T+1}, v{T}, s[60:63], 0 offen sc0 sc1")
                e("s_mov_b64 exec, -1")
                if fl == 1: g.nvm += 1
                else: g.lab("L_nofl")
            need(('B', j + 1), ('A', j + 2))
            e("s_barrier")
        e("s_barrier")
        e("s_endpgm")
    loader(0)
    g.lab("L_load2")
    loader(1)

    g.lab("L_aux")
    g.nvm = 0
    PA, PL = 5, 6
    U = 92
    GBF = 96
    srd(24, 6, 2048); srd(28, 8, 2048)
    e("s_lshr_b32 s40, s42, 1")
    e("s_and_b32 s41, s42, 1")
    e(f"v_lshrrev_b32 v{U}, 5, v{L}")
    e(f"v_lshlrev_b32 v{T}, 4, v{U}")
    e("s_lshl_b32 s46, s40, 10")
    e("s_lshl_b32 s47, s58, 7")
    e("s_add_u32 s46, s46, s47")
    e("s_lshl_b32 s47, s41, 6")
    e("s_add_u32 s47, s46, s47")
    e("s_mov_b32 s50, 0x55555555")
    e("s_mov_b32 s51, 0x55555555")
    e("s_mov_b64 exec, s[50:51]")
    for s in range(2):
        e(f"buffer_load_dwordx4 v[{GBF+4*s}:{GBF+4*s+3}], v{T}, s[24:27], s47 offen offset:{32*s}")
    e("s_not_b64 exec, exec")
    for s in range(2):
        e(f"buffer_load_dwordx4 v[{GBF+4*s}:{GBF+4*s+3}], v{T}, s[28:31], s47 offen offset:{32*s}")
    e("s_mov_b64 exec, -1")
    srd(32, 56, WS_BYTES)
    srd(60, 14, 256)
    e("v_mov_b32 v7, 0")
    e("s_cmp_lg_u32 s2, 0")
    e("s_cbranch_scc1 L_nononce")
    e("s_memrealtime s[54:55]")
    e("s_waitcnt lgkmcnt(0)")
    e("s_or_b32 s54, s54, 1")
    e(f"v_mov_b32 v{PL}, s54")
    e("s_mov_b64 exec, 1")
    e(f"buffer_store_dword v{PL}, v7, s[60:63], 0 offen sc0 sc1")
    e("s_mov_b64 exec, -1")
    g.lab("L_nononce")
    e("s_lshl_b32 s46, s36, 3")
    e(f"v_add_u32 v{PA}, s46, v{L}")
    e(f"v_subrev_u32 v{U+1}, 8, v{L}")
    e(f"v_lshl_add_u32 v{U+1}, v{U+1}, 3, s37")
    e(f"v_cmp_lt_u32 vcc, 7, v{L}")
    e("s_nop 1")
    e(f"v_cndmask_b32 v{PA}, v{PA}, v{U+1}, vcc")
    e(f"v_lshlrev_b32 v{PA}, 7, v{PA}")
    e(f"v_add_u32 v{PA}, {WS_F}, v{PA}")
    def nonce_issue():
        e(f"buffer_load_dword v{PL}, v7, s[60:63], 0 offen sc0 sc1")
    BR = 72
    e(f"v_bfe_u32 v{U+1}, v{L}, 2, 2")
    e(f"v_lshl_add_u32 v{U+2}, v{U}, 3, v{U+1}")
    e(f"v_lshlrev_b32 v{U+2}, 8, v{U+2}")
    e(f"v_bfe_u32 v{U+3}, v{L}, 4, 1")
    e(f"v_lshl_add_u32 v{U+2}, v{U+3}, 5, v{U+2}")
    e(f"v_and_b32 v{U+3}, 3, v{L}")
    e(f"v_lshl_add_u32 v{U+2}, v{U+3}, 3, v{U+2}")
    e("s_lshl_b32 s46, s40, 14")
    e("s_lshl_b32 s47, s41, 13")
    e("s_add_u32 s46, s46, s47")
    e(f"v_add_u32 v{U+2}, s46, v{U+2}")
    for k in range(4):
        e(f"v_xor_b32 v{U+3}, {k}, v{U+1}")
        e(f"v_lshl_add_u32 v{BR+k}, v{U+3}, 6, v{U+2}")
    for r in range(64):
        e(f"v_accvgpr_write_b32 a{r}, 0")
    e(f"v_and_b32 v{U+1}, 31, v{L}")
    e(f"v_lshlrev_b32 v{U+2}, 9, v{U+1}")
    e(f"v_lshl_add_u32 v{U+2}, v{U}, 4, v{U+2}")
    e("s_lshl_b32 s46, s37, 5")
    e("s_lshl_b32 s47, s40, 4")
    e("s_add_u32 s46, s46, s47")
    e("s_lshl_b32 s47, s58, 1")
    e("s_add_u32 s46, s46, s47")
    e("s_add_u32 s46, s46, s41")
    e("s_lshl_b32 s46, s46, 10")
    e(f"s_add_u32 s59, s46, {WS_S}")
    e("s_barrier")
    e("s_barrier")
    for s in range(2):
        for k in range(4):
            for h in range(2):
                e(f"ds_read_b64_tr_b16 v[{8+16*s+4*k+2*h}:{9+16*s+4*k+2*h}], v{BR+k} offset:{s*4096 + h*1024}")
    e("s_waitcnt vmcnt(0) lgkmcnt(0)")
    for s in range(2):
        for k in range(4):
            e(f"v_mfma_f32_32x32x16_bf16 a[{16*k}:{16*k+15}], v[{8+16*s+4*k}:{11+16*s+4*k}], v[{GBF+4*s}:{GBF+4*s+3}], a[{16*k}:{16*k+15}]")
    e("s_nop 7"); e("s_nop 7")
    e(f"v_cmp_gt_u32 vcc, 2, v{U+1}")
    e("s_and_saveexec_b64 s[50:51], vcc")
    for k in range(4):
        for q in range(4):
            e(f"buffer_store_dwordx4 a[{16*k+4*q}:{16*k+4*q+3}], v{U+2}, s[32:35], s59 offen offset:{k*128+q*32} sc0 sc1")
    e("s_mov_b64 exec, -1")
    nonce_issue()
    e("s_barrier")
    e("s_barrier")
    e("s_mov_b32 s52, 3000")
    g.lab("L_nonce")
    e("s_waitcnt vmcnt(0)")
    e(f"v_readfirstlane_b32 s54, v{PL}")
    e("s_cmp_lg_u32 s54, 0")
    e("s_cbranch_scc1 L_gotnonce")
    e("s_cmp_eq_u32 s52, 0")
    e("s_cbranch_scc1 L_noflag")
    e("s_sub_u32 s52, s52, 1")
    nonce_issue()
    e("s_branch L_nonce")
    g.lab("L_gotnonce")
    e("s_lshl_b32 s46, s36, 3")
    e("s_add_u32 s46, s46, s37")
    e("s_lshl_b32 s46, s46, 7")
    e(f"s_add_u32 s46, s46, {WS_F}")
    e(f"v_mov_b32 v{U}, s46")
    e("s_mov_b64 exec, 1")
    e(f"buffer_store_dword v{PL}, v{U}, s[32:35], 0 offen sc0 sc1")
    e("s_mov_b64 exec, -1")
    g.lab("L_noflag")

    def row_final(S1, S2, D):
        mean, var, t1 = S1, S2, D + 3
        e(f"v_mul_f32 v{mean}, 0x3a800000, v{mean}")
        e(f"v_mul_f32 v{var}, 0x3a800000, v{var}")
        e(f"v_fma_f32 v{var}, -v{mean}, v{mean}, v{var}")
        e(f"v_max_f32 v{var}, 0, v{var}")
        e(f"v_cvt_pk_bf16_f32 v{t1}, v{mean}, v{var}")
        e(f"v_lshlrev_b32 v{D}, 16, v{t1}")
        e(f"v_and_b32 v{var}, 0xffff0000, v{t1}")
        e(f"v_add_f32 v{var}, 0x3727c5ac, v{var}")
        e(f"v_cvt_pk_bf16_f32 v{t1}, v{var}, v{var}")
        e(f"v_lshlrev_b32 v{var}, 16, v{t1}")
        e(f"v_sqrt_f32 v{var}, v{var}")
        e("s_nop 0")
        e(f"v_cvt_pk_bf16_f32 v{t1}, v{var}, v{var}")
        e(f"v_lshlrev_b32 v{D+1}, 16, v{t1}")
        e(f"v_rcp_f32 v{D+2}, v{D+1}")
        e("s_nop 0")
    def poll_issue():
        e("s_mov_b32 exec_hi, 0xff")
        e(f"buffer_load_dword v{PL}, v{PA}, s[32:35], 0 offen sc0 sc1")
        e("s_mov_b32 exec_hi, -1")
    def poll_check():
        e("s_mov_b32 exec_hi, 0xff")
        e(f"v_cmp_ne_u32 vcc, s54, v{PL}")
        e("s_mov_b32 exec_hi, -1")
    D0 = 24
    def gatherA():
        e(f"v_lshlrev_b32 v{U}, 4, v{L}")
        e("s_lshl_b32 s46, s36, 14")
        for j in range(16):
            if j % 4 == 0 and j: e("s_add_u32 s46, s46, 4096")
            e(f"buffer_load_dwordx4 v[{D0+4*j}:{D0+3+4*j}], v{U}, s[32:35], s46 offen offset:{(j%4)*1024} sc0 sc1")
        e("s_lshl_b32 s46, s37, 15")
        e(f"s_add_u32 s46, s46, {WS_S + 16384}")
        for j in range(16):
            if j % 4 == 0 and j: e("s_add_u32 s46, s46, 4096")
            e(f"buffer_load_dwordx4 a[{4*j}:{4*j+3}], v{U}, s[32:35], s46 offen offset:{(j%4)*1024} sc0 sc1")
    def sum16(dst):
        for r in range(4): e(f"v_add_f32 v{dst+r}, v{D0+r}, v{D0+4+r}")
        for j in range(2, 16):
            for r in range(4): e(f"v_add_f32 v{dst+r}, v{dst+r}, v{D0+4*j+r}")
    def sumA_gatherB():
        sum16(16)
        for r in range(64): e(f"v_accvgpr_read_b32 v{D0+r}, a{r}")
        sum16(20)
        e("s_lshl_b32 s46, s37, 15")
        e(f"s_add_u32 s46, s46, {WS_S}")
        for j in range(16):
            if j % 4 == 0 and j: e("s_add_u32 s46, s46, 4096")
            e(f"buffer_load_dwordx4 v[{D0+4*j}:{D0+3+4*j}], v{U}, s[32:35], s46 offen offset:{(j%4)*1024} sc0 sc1")
        row_final(16, 17, 8)
        row_final(18, 19, 12)
    def params_write():
        e(f"v_lshlrev_b32 v{U+1}, 5, v{L}")
        e(f"v_add_u32 v{U+1}, {ROWP}, v{U+1}")
        e(f"ds_write_b128 v{U+1}, v[8:11]")
        e(f"ds_write_b128 v{U+1}, v[12:15] offset:16")
        e(f"v_lshrrev_b32 v{U+2}, 5, v{L}")
        e(f"v_and_b32 v{U+3}, 31, v{L}")
        e(f"v_lshlrev_b32 v{U+3}, 4, v{U+3}")
        e(f"v_lshl_add_u32 v{U+3}, v{U+2}, 10, v{U+3}")
        e(f"v_add_u32 v{U+3}, {SARR}, v{U+3}")
        e(f"ds_write_b128 v{U+3}, v[16:19]")
        e(f"ds_write_b128 v{U+3}, v[20:23] offset:512")
    e("s_mov_b32 s53, 0")
    e("s_barrier")
    e("s_barrier")
    if not force_fb: poll_issue()
    e("s_barrier")
    if not force_fb:
        e("s_waitcnt vmcnt(0)")
        poll_check()
        e("s_cbranch_vccnz L_early_no")
        e("s_cmp_eq_u32 s54, 0")
        e("s_cbranch_scc1 L_early_no")
        e("s_mov_b32 s53, 1")
        gatherA()
        g.lab("L_early_no")
    e("s_barrier")
    e("s_cmp_eq_u32 s53, 0")
    e("s_cbranch_scc1 L_early_no2")
    e("s_waitcnt vmcnt(0)")
    sumA_gatherB()
    g.lab("L_early_no2")
    e("s_barrier")
    e("s_cmp_lg_u32 s53, 0")
    e("s_cbranch_scc1 L_gdone")
    e("s_cmp_eq_u32 s54, 0")
    e("s_cbranch_scc1 L_fallback")
    e(f"s_mov_b32 s52, {0 if force_fb==1 else 40000}")
    g.lab("L_poll")
    poll_issue()
    e("s_waitcnt vmcnt(0)")
    poll_check()
    if force_fb != 1:
        e("s_cbranch_vccz L_gather")
    e("s_cmp_eq_u32 s52, 0")
    e("s_cbranch_scc1 L_fallback")
    e("s_sub_u32 s52, s52, 1")
    e("s_sleep 2")
    e("s_branch L_poll")
    g.lab("L_gather")
    gatherA()
    e("s_waitcnt vmcnt(0)")
    sumA_gatherB()
    g.lab("L_gdone")
    e("s_waitcnt vmcnt(0)")
    sum16(16)
    g.lab("L_final")
    params_write()
    e("s_waitcnt lgkmcnt(0)")
    e("s_barrier")
    e("s_endpgm")

    g.lab("L_fallback")
    e("s_mov_b32 s55, 0x3f803f80")
    e(f"v_cmp_lt_u32 vcc, 31, v{L}")
    e("s_mov_b64 s[50:51], vcc")
    for a in range(2):
        e(f"v_lshlrev_b32 v{U}, 12, v{L}")
        e("s_lshl_b32 s46, s36, 18")
        e(f"s_add_u32 s46, s46, {a << 11}")
        e("v_mov_b32 v30, 0"); e("v_mov_b32 v31, 0")
        e("s_mov_b32 s52, 128")
        g.lab(f"L_fb1_{a}")
        e(f"buffer_load_dwordx4 v[24:27], v{U}, s[16:19], s46 offen")
        e("s_waitcnt vmcnt(0)")
        for r in range(4):
            e(f"v_dot2_f32_bf16 v30, v{24+r}, s55, v30")
            e(f"v_dot2_f32_bf16 v31, v{24+r}, v{24+r}, v31")
        e("s_add_u32 s46, s46, 16")
        e("s_sub_u32 s52, s52, 1")
        e("s_cmp_lg_u32 s52, 0")
        e(f"s_cbranch_scc1 L_fb1_{a}")
        e("s_nop 2")
        row_final(30, 31, 8 + 4*a)
        e(f"v_and_b32 v{U}, 31, v{L}")
        e(f"v_lshlrev_b32 v{U}, 3, v{U}")
        e("s_lshl_b32 s46, s37, 8")
        e(f"s_add_u32 s46, s46, {a << 20}")
        e(f"s_mov_b32 s47, {a << 10}")
        e(f"v_mov_b32 v{U+1}, 0")
        for r in range(4): e(f"v_mov_b32 v{16+4*a+r}, 0")
        e("s_mov_b32 s52, 512")
        g.lab(f"L_fb2_{a}")
        e(f"buffer_load_dwordx2 v[24:25], v{U}, s[20:23], s46 offen")
        e(f"buffer_load_ushort v26, v{U+1}, s[24:27], s47 offen")
        e(f"buffer_load_ushort v27, v{U+1}, s[28:31], s47 offen")
        e("s_waitcnt vmcnt(0)")
        e("v_cndmask_b32 v26, v26, v27, s[50:51]")
        e("v_lshlrev_b32 v26, 16, v26")
        e("v_lshlrev_b32 v28, 16, v24"); e("v_and_b32 v29, 0xffff0000, v24")
        e("v_lshlrev_b32 v30, 16, v25"); e("v_and_b32 v31, 0xffff0000, v25")
        for r in range(4): e(f"v_fmac_f32 v{16+4*a+r}, v{28+r}, v26")
        e("s_add_u32 s46, s46, 2048")
        e("s_add_u32 s47, s47, 2")
        e("s_sub_u32 s52, s52, 1")
        e("s_cmp_lg_u32 s52, 0")
        e(f"s_cbranch_scc1 L_fb2_{a}")
    e("s_branch L_final")
    g.lab("L_end")
    e("s_endpgm")

    out = HDR
    out += "; Override launch geometry by editing the next line.\n"
    out += f"; @launch grid=(256,1,1) block=(768,1,1) lds={LDS_BYTES}\n"
    out += '.amdgcn_target "amdgcn-amd-amdhsa--gfx950"\n.text\n'
    out += f".globl {NAME}\n.p2align 8\n.type {NAME},@function\n{NAME}:\n"
    out += "\n".join(x for x in g.l if x is not None and x.strip()) + "\n"
    out += f""".section .rodata,"a"
.p2align 6
.amdhsa_kernel {NAME}
  .amdhsa_next_free_vgpr {NV+NA}
  .amdhsa_next_free_sgpr 96
  .amdhsa_accum_offset {NV}
  .amdhsa_group_segment_fixed_size 0
  .amdhsa_kernarg_size 56
  .amdhsa_user_sgpr_count 2
  .amdhsa_user_sgpr_kernarg_segment_ptr 1
  .amdhsa_system_sgpr_workgroup_id_x 1
.end_amdhsa_kernel
"""
    return out

if __name__ == '__main__':
    kw = {}
    for a in sys.argv[2:]:
        k, v = a.split('='); kw[k] = int(v)
    open(sys.argv[1], 'w').write(gen(**kw))
```

```python
import sys

NAME = "standalone__layernorm_linear__sampling_kernel"
HDR = open('standalone__layernorm_linear__sampling.s.ref').read().split('; Override launch')[0]

A_BASE = 98304
LDS_BYTES = 163840
ROWP = A_BASE
SARR = A_BASE + 2048
PIVX = A_BASE + 8192
WS_S = 1 << 20
WS_F = (1 << 20) + (1 << 19)
WS_BYTES = 2 << 20

NV, NA = 104, 64
V_LANE, V_PIV, V_GOFF = 1, 2, 3
V_ARD, V_BRD, V_BRD2, V_G, V_RAW, V_VF, V_T, V_X, V_ACC = 4, 8, 12, 16, 20, 40, 48, 64, 72
A_BF = 32

class G:
    def __init__(self):
        self.l = []; self.nvm = 0
    def e(self, s): self.l.append("    " + s)
    def lab(self, s): self.l.append(s + ":")
    def c(self, s): self.l.append("    ; " + s)
    def vm(self, s):
        self.e(s); self.nvm += 1; return self.nvm
    def wait_vm(self, idx, extra=""):
        n = self.nvm - idx
        assert 0 <= n <= 63, n
        self.e(f"s_waitcnt vmcnt({n}){extra}")

def gen(stamps=0, force_fb=0, pk=1, early=0, ost=1, fl=0, fast=1, est=0, pr=0, sched=0):
    g = G(); e = g.e
    nst = [0]
    def stamp():
        if stamps:
            e(f"s_{'memtime' if stamps==2 else 'memrealtime'} s[{80+2*nst[0]}:{81+2*nst[0]}]"); nst[0] += 1
    def srd(d, b, n):
        e(f"s_mov_b32 s{d}, s{b}")
        e(f"s_and_b32 s{d+1}, s{b+1}, 0xffff")
        e(f"s_mov_b32 s{d+2}, {n}")
        e(f"s_mov_b32 s{d+3}, 0x00020000")
    L = V_LANE; T = V_T
    e("s_cmp_ge_u32 s2, 256")
    e("s_cbranch_scc1 L_end")
    stamp()
    e("s_load_dwordx8 s[4:11], s[0:1], 0")
    e("s_load_dwordx4 s[12:15], s[0:1], 32")
    e("s_load_dwordx2 s[56:57], s[0:1], 48")
    e(f"v_lshrrev_b32 v{T}, 6, v0")
    e(f"v_and_b32 v{L}, 63, v0")
    e(f"v_readfirstlane_b32 s39, v{T}")
    e("s_and_b32 s46, s2, 7")
    e("s_lshr_b32 s47, s2, 3")
    e("s_lshr_b32 s38, s47, 3")
    e("s_lshl_b32 s36, s46, 2")
    e("s_add_u32 s36, s36, s38")
    e("s_and_b32 s37, s47, 7")
    e("s_lshl_b32 s58, s38, 1")
    e("s_add_u32 s58, s58, s37")
    e("s_and_b32 s48, s46, 1")
    e("s_add_u32 s58, s58, s48")
    e("s_and_b32 s58, s58, 7")
    e("s_lshr_b32 s42, s46, 1")
    e("s_cmp_ge_u32 s39, 8")
    e("s_cbranch_scc1 L_helpers")

    e("s_and_b32 s40, s39, 3")
    e("s_lshr_b32 s41, s39, 2")
    e("s_lshl_b32 s44, s39, 13")
    e(f"s_add_u32 s44, s44, {A_BASE}")
    e(f"v_bfe_u32 v{T+2}, v{L}, 2, 2")
    e(f"v_lshlrev_b32 v{T+2}, 5, v{T+2}")
    e(f"v_lshrrev_b32 v{T+1}, 5, v{L}")
    e(f"v_lshl_add_u32 v{T+2}, v{T+1}, 4, v{T+2}")
    e(f"v_and_b32 v{T+3}, 3, v{L}")
    e(f"v_lshl_add_u32 v{V_GOFF}, v{T+3}, 2, v{T+2}")
    e("s_lshl_b32 s45, s41, 10")
    e("s_waitcnt lgkmcnt(0)")
    srd(24, 6, 2048)
    GP = T + 8
    for c in range(8):
        e(f"s_add_u32 s46, s58, {c}")
        e("s_and_b32 s46, s46, 7")
        e("s_lshl_b32 s46, s46, 7")
        e("s_add_u32 s46, s46, s45")
        g.vm(f"buffer_load_dword v{GP+c}, v{V_GOFF}, s[24:27], s46 offen")
    def loadG(c):
        e(f"v_lshlrev_b32 v{V_G+2*(c&1)}, 16, v{GP+c}")
        e(f"v_and_b32 v{V_G+2*(c&1)+1}, 0xffff0000, v{GP+c}")
    srd(32, 12, 8388608)
    srd(28, 56, WS_BYTES)
    e(f"v_and_b32 v{T}, 31, v{L}")
    e(f"v_bfe_u32 v{T+2}, v{L}, 1, 3")
    e(f"v_xor_b32 v{T+2}, v{T+2}, v{T+1}")
    e(f"v_lshlrev_b32 v{T+3}, 7, v{T}")
    e(f"v_lshl_add_u32 v{T+3}, v{T+2}, 4, v{T+3}")
    e(f"v_add_u32 v{V_ARD}, s44, v{T+3}")
    for s in range(1, 4):
        e(f"v_xor_b32 v{V_ARD+s}, {32*s}, v{V_ARD}")
    e(f"v_bfe_u32 v{T+2}, v{L}, 2, 2")
    e(f"v_lshl_add_u32 v{T+3}, v{T+1}, 3, v{T+2}")
    e(f"v_lshlrev_b32 v{T+3}, 8, v{T+3}")
    e(f"v_bfe_u32 v{T+4}, v{L}, 4, 1")
    e(f"v_lshl_add_u32 v{T+3}, v{T+4}, 5, v{T+3}")
    e(f"v_and_b32 v{T+4}, 3, v{L}")
    e(f"v_lshl_add_u32 v{T+3}, v{T+4}, 3, v{T+3}")
    e("s_lshl_b32 s46, s41, 14")
    e(f"v_add_u32 v{T+3}, s46, v{T+3}")
    e("s_lshl_b32 s49, s41, 1")
    for k in range(4):
        e(f"s_xor_b32 s46, s49, {k}")
        e(f"v_xor_b32 v{T+4}, s46, v{T+2}")
        e(f"v_lshl_add_u32 v{V_BRD+k}, v{T+4}, 6, v{T+3}")
        e(f"v_add_u32 v{V_BRD2+k}, 0x10000, v{V_BRD+k}")
    for r in range(32):
        e(f"v_accvgpr_write_b32 a{r}, 0")
        e(f"v_mov_b32 v{V_ACC+r}, 0")
    e(f"v_lshlrev_b32 v{V_X}, 3, v{T}")
    e("s_lshl_b32 s46, s36, 14")
    e("s_lshl_b32 s47, s41, 3")
    e("s_add_u32 s47, s47, s58")
    e("s_lshl_b32 s47, s47, 10")
    e("s_add_u32 s46, s46, s47")
    e("s_lshl_b32 s47, s40, 8")
    e("s_add_u32 s59, s46, s47")
    e(f"v_mov_b32 v{T}, 0x3f803f80")
    for k in range(4):
        e(f"v_mov_b32 v{T+1+k}, 0")

    rs = lambda t: V_RAW + 4 * (t % 5)
    def readA1(t):
        c, s = t >> 2, t & 3
        e(f"ds_read_b128 v[{rs(t)}:{rs(t)+3}], v{V_ARD+s} offset:{(c&1)*4096}")

    e("s_barrier")
    stamp()
    for t in range(4): readA1(t)
    e("s_waitcnt lgkmcnt(0)")
    for r in range(16):
        e(f"v_dot2_f32_bf16 v{T+1+(r&1)}, v{V_RAW+r}, v{T}, v{T+1+(r&1)}")
        e(f"v_dot2_f32_bf16 v{T+3+(r&1)}, v{V_RAW+r}, v{V_RAW+r}, v{T+3+(r&1)}")
    e("s_waitcnt vmcnt(0)")
    loadG(0); loadG(1)
    e(f"v_add_f32 v{T+1}, v{T+1}, v{T+2}")
    e(f"v_add_f32 v{T+2}, v{T+3}, v{T+4}")
    e(f"v_mov_b32 v{T+3}, v{T+1}")
    e(f"v_mov_b32 v{T+4}, v{T+2}")
    e("s_nop 1")
    e(f"v_permlane32_swap_b32 v{T+3}, v{T+1}")
    e(f"v_permlane32_swap_b32 v{T+4}, v{T+2}")
    e("s_nop 1")
    e(f"v_add_f32 v{V_X+2}, v{T+1}, v{T+3}")
    e(f"v_add_f32 v{V_X+3}, v{T+2}, v{T+4}")
    e(f"v_mul_f32 v{V_PIV}, 0x3c800000, v{V_X+2}")
    e("s_mov_b32 exec_hi, 0")
    e(f"buffer_store_dwordx2 v[{V_X+2}:{V_X+3}], v{V_X}, s[28:31], s59 offen sc0 sc1")
    e("s_mov_b64 exec, -1")

    def norm_ops(t, nopiv=False):
        c, s = t >> 2, t & 3
        raw = rs(t)
        vf = V_VF + (t & 1) * 4
        glo = V_G + 2 * (c & 1)
        groups = []
        for pp in range(2):
            o = []
            ps = (2 * pp, 2 * pp + 1)
            for p in ps:
                t0 = T + 2 * p
                o.append(f"v_lshlrev_b32 v{t0}, 16, v{raw+p}")
                o.append(f"v_and_b32 v{t0+1}, 0xffff0000, v{raw+p}")
            for p in ps:
                t0 = T + 2 * p
                if nopiv: continue
                o.append(f"v_sub_f32 v{t0}, v{t0}, v{V_PIV}")
                o.append(f"v_sub_f32 v{t0+1}, v{t0+1}, v{V_PIV}")
            for p in ps:
                t0 = T + 2 * p
                o.append(f"v_mul_f32_dpp v{t0}, v{glo}, v{t0} row_newbcast:{4*s+p} row_mask:0xf bank_mask:0xf")
                o.append(f"v_mul_f32_dpp v{t0+1}, v{glo+1}, v{t0+1} row_newbcast:{4*s+p} row_mask:0xf bank_mask:0xf")
            for p in ps:
                t0 = T + 2 * p
                o.append(f"v_cvt_pk_bf16_f32 v{vf+p}, v{t0}, v{t0+1}")
            hl = len(o) // 2
            groups.append(o[:hl]); groups.append(o[hl:])
        return groups

    def readB(t):
        c, s = t >> 2, t & 3
        slot = c % 3
        buf = A_BF + (t & 1) * 16
        for k in range(4):
            for h in range(2):
                if slot < 2:
                    e(f"ds_read_b64_tr_b16 a[{buf+4*k+2*h}:{buf+4*k+2*h+1}], v{V_BRD+k} offset:{slot*32768 + s*4096 + h*1024}")
                else:
                    e(f"ds_read_b64_tr_b16 a[{buf+4*k+2*h}:{buf+4*k+2*h+1}], v{V_BRD2+k} offset:{s*4096 + h*1024}")

    def accreg(k):
        return f"v[{V_ACC+16*k}:{V_ACC+16*k+15}]" if k < 2 else f"a[{16*(k-2)}:{16*(k-2)+15}]"
    EA = 12
    def mainloop(nopiv):
        for t in range(-1, 32):
            g.c(f"---- step {t}")
            loadG_next = None
            if t == 7: e("s_waitcnt vmcnt(0) lgkmcnt(0)")
            elif t >= 0: e("s_waitcnt lgkmcnt(0)")
            if (t + 1) % 4 == 0 and t + 1 <= 31:
                j = (t + 1) // 4
                e("s_barrier")
                if 1 <= j <= 6: loadG_next = j + 1
            if t in (-1, 7, 15, 23) and not est: stamp()
            if pr and t == pr - 2:
                tg = "f" if nopiv else "s"
                e("s_cmp_lt_u32 s39, 4"); e(f"s_cbranch_scc1 L_np{tg}"); e("s_setprio 1"); g.lab(f"L_np{tg}")
            groups = norm_ops(t + 1, nopiv) if t + 1 <= 31 else [[], [], [], []]
            buf = A_BF + (t & 1) * 16
            vf = V_VF + (t & 1) * 4
            def mfma(k):
                if t >= 0:
                    e(f"v_mfma_f32_32x32x16_bf16 {accreg(k)}, a[{buf+4*k}:{buf+4*k+3}], v[{vf}:{vf+3}], {accreg(k)}")
            ok = (2, 3, 0, 1) if t == 31 else (0, 1, 2, 3)
            mfma(ok[0])
            if t + 5 <= 31: readA1(t + 5)
            if t + 1 <= 31: readB(t + 1)
            allv = groups[0] + groups[1] + groups[2] + groups[3]
            if sched == 0:
                n3 = (len(allv) + 2) // 3
                parts = [allv[:n3], allv[n3:2*n3], allv[2*n3:], []]
            elif sched == 1:
                parts = groups
            elif sched == 2:
                n4 = len(allv) // 4
                parts = [allv[:n4-1], allv[n4-1:2*n4+1], allv[2*n4+1:], []]
            for o in parts[0]: e(o)
            mfma(ok[1])
            for o in parts[1]: e(o)
            mfma(ok[2])
            for o in parts[2]: e(o)
            mfma(ok[3])
            for o in parts[3]: e(o)
            if sched == 1 and t >= 0: e("s_nop 0")
            if t == 24:
                e(f"v_and_b32 v{T}, 31, v{L}")
                e(f"v_lshrrev_b32 v{T+1}, 5, v{L}")
                e("s_lshl_b32 s46, s40, 9")
                e(f"s_add_u32 s46, s46, {ROWP}")
                e(f"v_lshl_add_u32 v{EA+1}, v{T}, 4, s46")
                e("s_lshl_b32 s46, s40, 7")
                e(f"s_add_u32 s46, s46, {PIVX}")
                e(f"v_lshl_add_u32 v{EA}, v{T}, 2, s46")
                e("s_lshl_b32 s47, s41, 9")
                e(f"v_add_u32 v{EA+3}, s47, v{EA}")
                e(f"v_lshl_add_u32 v{EA}, v{T+1}, 9, v{EA}")
                e("s_lshl_b32 s46, s41, 8")
                e(f"s_add_u32 s46, s46, {SARR}")
                e(f"v_lshl_add_u32 v{EA+2}, v{T}, 2, s46")
                e(f"v_lshl_add_u32 v{EA+2}, v{T+1}, 9, v{EA+2}")
            if t == 28:
                e(f"ds_write_b32 v{EA+3}, v{V_PIV}")
            if loadG_next is not None: loadG(loadG_next)
            if t < 0: e("s_nop 1")


    if fast:
        e(f"v_mul_f32 v{T}, v{V_X+2}, v{V_X+2}")
        e(f"v_mul_f32 v{T+1}, 0x42000000, v{V_X+3}")
        e(f"v_cmp_nle_f32 vcc, v{T}, v{T+1}")
        e("s_cbranch_vccnz L_slowloop" if fast == 1 else "s_branch L_slowloop")
        e(f"v_mov_b32 v{V_PIV}, 0")
        n0 = nst[0]
        mainloop(True)
        e("s_branch L_epi")
        g.lab("L_slowloop")
        nst[0] = n0
        mainloop(False)
        g.lab("L_epi")
    else:
        mainloop(False)
    g.c("---- epilogue")
    stamp()
    e(f"v_lshlrev_b32 v{T+7}, 4, v{L}")
    e("s_lshl_b32 s46, s40, 13")
    e("s_lshl_b32 s47, s41, 16")
    e("s_add_u32 s46, s46, s47")
    e(f"v_add_u32 v{T+8}, s46, v{T+7}")
    e("s_xor_b32 s46, s46, 0x10000")
    e(f"v_add_u32 v{T+9}, s46, v{T+7}")
    e(f"v_and_b32 v{T+4}, 31, v{L}")
    e(f"v_lshrrev_b32 v{T+6}, 5, v{L}")
    e("s_nop 1")
    for q in range(8):
        e(f"ds_write_b128 v{T+8}, a[{4*q}:{3+4*q}] offset:{q*1024}")
    e(f"v_and_b32 v{T+12}, 7, v{T+4}")
    e(f"v_xor_b32 v{T+12}, v{T+12}, v{T+6}")
    e(f"v_lshlrev_b32 v{T+12}, 4, v{T+12}")
    e(f"v_lshl_add_u32 v{T+12}, v{T+4}, 7, v{T+12}")
    e("s_add_u32 s46, s44, 4096")
    e(f"v_add_u32 v{T+12}, s46, v{T+12}")
    e(f"v_lshrrev_b32 v{T+13}, 3, v{L}")
    e(f"v_and_b32 v{T+14}, 7, v{L}")
    e(f"v_xor_b32 v{T+15}, v{T+14}, v{T+13}")
    e(f"v_lshlrev_b32 v{T+15}, 4, v{T+15}")
    e(f"v_lshl_add_u32 v{T+15}, v{T+13}, 7, v{T+15}")
    e(f"v_add_u32 v{T+15}, s46, v{T+15}")
    e(f"v_lshlrev_b32 v{T+14}, 4, v{T+14}")
    e(f"v_lshl_add_u32 v{T+13}, v{T+13}, 11, v{T+14}")
    for z in range(1, 4):
        e(f"v_xor_b32 v{T+z}, {z*32}, v{T+12}")
    e("s_lshl_b32 s47, s36, 18")
    e("s_lshl_b32 s48, s37, 8")
    e("s_add_u32 s47, s47, s48")
    e("s_lshl_b32 s48, s41, 7")
    e("s_add_u32 s47, s47, s48")
    e("s_lshl_b32 s48, s40, 16")
    e("s_add_u32 s47, s47, s48")
    e("s_waitcnt lgkmcnt(0)")
    if est: stamp()
    e("s_barrier")
    if est: stamp()
    P = 16
    RP = V_X; SV = V_X + 4; CC = 3
    e(f"ds_read_b32 v{CC}, v{EA}")
    e(f"ds_read_b128 v[{RP}:{RP+3}], v{EA+1}")
    for k in range(2):
        e(f"ds_read_b32 v{SV+2*k}, v{EA+2} offset:{k*128}")
        e(f"ds_read_b32 v{SV+2*k+1}, v{EA+2} offset:{k*128+1024}")
    for q in range(8):
        e(f"ds_read_b128 v[{P+4*q}:{P+3+4*q}], v{T+9} offset:{q*1024}")
    e("s_waitcnt lgkmcnt(8)")
    e(f"v_sub_f32 v{CC}, v{CC}, v{RP}")
    e(f"v_mov_b32 v{RP+3}, v{RP+2}")
    e("s_nop 0")
    for k in range(2):
        e(f"v_mfma_f32_32x32x2_f32 {accreg(k)}, v{SV+2*k+1}, v{RP+1}, {accreg(k)}")
        e(f"v_mfma_f32_32x32x2_f32 {accreg(k)}, v{SV+2*k}, v{CC}, {accreg(k)}")
    e("s_nop 15")
    e("s_nop 2")
    e("s_waitcnt lgkmcnt(0)")
    if est: stamp()
    O = 4
    for k in range(2):
        for q in range(4):
            r0 = V_ACC + 16*k + 4*q
            p0 = P + 16*k + 4*q
            if pk:
                for j in (0, 2):
                    e(f"v_pk_add_f32 v[{p0+j}:{p0+j+1}], v[{p0+j}:{p0+j+1}], v[{r0+j}:{r0+j+1}]")
                for j in (0, 2):
                    e(f"v_pk_mul_f32 v[{p0+j}:{p0+j+1}], v[{p0+j}:{p0+j+1}], v[{RP+2}:{RP+3}]")
            else:
                for j in range(4): e(f"v_add_f32 v{p0+j}, v{p0+j}, v{r0+j}")
                for j in range(4): e(f"v_mul_f32 v{p0+j}, v{p0+j}, v{RP+2}")
            oo = O + (q & 1) * 2 + (q >> 1) * 4
            e(f"v_cvt_pk_bf16_f32 v{oo}, v{p0}, v{p0+1}")
            e(f"v_cvt_pk_bf16_f32 v{oo+1}, v{p0+2}, v{p0+3}")
            if q & 1:
                o4 = O + (q >> 1) * 4
                z = 2*k + (q >> 1)
                e("s_nop 1")
                e(f"v_permlane32_swap_b32 v{o4}, v{o4+2}")
                e(f"v_permlane32_swap_b32 v{o4+1}, v{o4+3}")
                e("s_nop 1")
                e(f"ds_write_b128 v{T+12 if z == 0 else T+z}, v[{o4}:{o4+3}]")
    e("s_waitcnt lgkmcnt(0)")
    if est: stamp(); e("s_waitcnt lgkmcnt(0)")
    for it in range(4):
        e(f"ds_read_b128 v[{P+4*it}:{P+3+4*it}], v{T+15} offset:{it*1024}")
    for it in range(4):
        e(f"s_waitcnt lgkmcnt({3-it})")
        if it: e(f"s_add_u32 s47, s47, {8*2048}")
        e(f"buffer_store_dwordx4 v[{P+4*it}:{P+3+4*it}], v{T+13}, s[32:35], s47 offen" + ["", " sc1"][ost])
    if stamps:
        e("s_waitcnt vmcnt(0)")
        stamp()
        e("s_waitcnt lgkmcnt(0)")
        e("s_mov_b32 s30, 0x1000000")
        e("s_lshl_b32 s46, s2, 3")
        e("s_add_u32 s46, s46, s39")
        e("s_lshl_b32 s46, s46, 6")
        e("s_add_u32 s46, s46, 0x400000")
        e("v_mov_b32 v2, s46")
        for k in range(16):
            e(f"v_mov_b32 v{4+k}, s{80+k}")
        e(f"v_cmp_eq_u32 vcc, 0, v{L}")
        e("s_and_saveexec_b64 s[50:51], vcc")
        for k in range(4):
            e(f"buffer_store_dwordx4 v[{4+4*k}:{7+4*k}], v2, s[28:31], 0 offen offset:{16*k}")
        e("s_waitcnt vmcnt(0)")
    e("s_endpgm")

    g.lab("L_helpers")
    OA0, OA1, OB = 2, 3, 4
    e(f"v_lshrrev_b32 v{T}, 3, v{L}")
    e(f"v_lshlrev_b32 v{T}, 11, v{T}")
    e(f"v_and_b32 v{T+1}, 7, v{L}")
    e(f"v_lshrrev_b32 v{T+2}, 4, v{L}")
    e(f"v_xor_b32 v{T+1}, v{T+1}, v{T+2}")
    e(f"v_lshl_add_u32 v{OA0}, v{T+1}, 4, v{T}")
    e(f"v_xor_b32 v{OA1}, 64, v{OA0}")
    e(f"v_lshlrev_b32 v{T}, 11, v{T+2}")
    e(f"v_and_b32 v{T+1}, 15, v{L}")
    e(f"v_lshlrev_b32 v{T+3}, 2, v{T+2}")
    e(f"v_xor_b32 v{T+1}, v{T+1}, v{T+3}")
    e(f"v_lshl_add_u32 v{OB}, v{T+1}, 4, v{T}")
    e("s_lshl_b32 s43, s36, 18")
    e("s_lshl_b32 s45, s37, 8")
    e("s_waitcnt lgkmcnt(0)")
    srd(16, 4, 8388608)
    srd(20, 10, 2097152)
    e("s_cmp_eq_u32 s39, 11")
    e("s_cbranch_scc1 L_aux")
    e("s_cmp_eq_u32 s39, 10")
    e("s_cbranch_scc1 L_load2")
    e("s_sub_u32 s40, s39, 8")
    e("s_lshl_b32 s46, s40, 10")
    e("s_add_u32 s43, s43, s46")
    e("s_lshl_b32 s46, s40, 20")
    e("s_add_u32 s45, s45, s46")
    e("s_lshl_b32 s44, s40, 15")
    e(f"s_add_u32 s44, s44, {A_BASE}")
    e("s_lshl_b32 s49, s40, 14")

    def loader(kind):
        g.nvm = 0
        ids = {}
        def dmaA(c):
            if kind != 0: return
            e(f"s_add_u32 s47, s58, {c}")
            e("s_and_b32 s47, s47, 7")
            e("s_lshl_b32 s47, s47, 7")
            e("s_add_u32 s47, s47, s43")
            for i in range(4):
                for q in range(4):
                    e(f"s_add_u32 m0, s44, {i*8192 + (c&1)*4096 + q*1024}")
                    e(f"s_add_u32 s46, s47, {(32*i + 8*q)*2048}")
                    ids[('A', c)] = g.vm(f"buffer_load_dwordx4 v{OA0 if q%2==0 else OA1}, s[16:19], s46 offen lds")
        def dmaB(c):
            e(f"s_add_u32 s47, s58, {c}")
            e("s_and_b32 s47, s47, 7")
            e("s_lshl_b32 s47, s47, 17")
            e("s_add_u32 s47, s47, s45")
            if kind == 0:
                for q in range(8):
                    e(f"s_add_u32 m0, s49, {(c%3)*32768 + q*1024}")
                    e(f"s_add_u32 s46, s47, {(4*q)*2048}")
                    ids[('B', c)] = g.vm(f"buffer_load_dwordx4 v{OB}, s[20:23], s46 offen lds")
            else:
                for h in range(2):
                    for q in range(8, 16):
                        e(f"s_mov_b32 m0, {(c%3)*32768 + h*16384 + q*1024}")
                        e(f"s_add_u32 s46, s47, {(h*512 + 4*q)*2048}")
                        ids[('B', c)] = g.vm(f"buffer_load_dwordx4 v{OB}, s[20:23], s46 offen lds")
        def need(*keys):
            ks = [ids[k] for k in keys if k in ids]
            if ks: g.wait_vm(max(ks))
        dmaA(0); dmaB(0)
        if early == 1: dmaA(1); dmaB(1); dmaB(2)
        if early == 2: dmaA(1)
        need(('A', 0))
        e("s_barrier")
        if not early: dmaA(1); dmaB(1); dmaB(2)
        if early == 2: dmaB(1); dmaB(2)
        need(('B', 0), ('A', 1))
        e("s_barrier")
        dmaA(2)
        need(('B', 1), ('A', 2))
        e("s_barrier")
        dmaA(3); dmaB(3)
        need(('B', 2), ('A', 3))
        e("s_barrier")
        for j in range(2, 6):
            dmaA(j + 2); dmaB(j + 2)
            if j == 5:
                tail_setup()
                tail_poll_issue(); g.nvm += 2
            need(('B', j + 1), ('A', j + 2))
            e("s_barrier")
        e("s_branch L_tail")
    PA, PL, PN, U, D0 = 5, 6, 7, 92, 24
    def tail_setup():
        srd(32, 56, WS_BYTES)
        srd(60, 14, 256)
        e("s_sub_u32 s40, s39, 8")
        e("s_lshl_b32 s46, s36, 3")
        e(f"v_add_u32 v{PA}, s46, v{L}")
        e("s_mov_b64 s[50:51], 0xff")
        e("s_lshl_b32 s64, s36, 14")
        e("s_cmp_eq_u32 s40, 0")
        lbl = f"L_ts{len(g.l)}"
        e(f"s_cbranch_scc1 {lbl}")
        e("s_sub_u32 s41, s40, 1")
        e("s_lshl_b32 s46, s41, 4")
        e(f"v_add_u32 v{PA}, s46, v{L}")
        e(f"v_lshl_add_u32 v{PA}, v{PA}, 3, s37")
        e("s_mov_b64 s[50:51], 0xffff")
        e("s_lshl_b32 s64, s37, 15")
        e("s_lshl_b32 s46, s41, 14")
        e("s_add_u32 s64, s64, s46")
        e(f"s_add_u32 s64, s64, {WS_S}")
        g.lab(lbl)
        e(f"v_lshlrev_b32 v{PA}, 7, v{PA}")
        e(f"v_add_u32 v{PA}, {WS_F}, v{PA}")
        e(f"v_mov_b32 v{U+3}, 0")
    def tail_poll_issue():
        e(f"buffer_load_dword v{PN}, v{U+3}, s[60:63], 0 offen sc0 sc1")
        e("s_mov_b64 exec, s[50:51]")
        e(f"buffer_load_dword v{PL}, v{PA}, s[32:35], 0 offen sc0 sc1")
        e("s_mov_b64 exec, -1")
    loader(0)
    g.lab("L_load2")
    loader(1)

    g.lab("L_aux")
    g.nvm = 0
    PA, PL = 5, 6
    U = 92
    GBF = 96
    srd(24, 6, 2048); srd(28, 8, 2048)
    e("s_lshr_b32 s40, s42, 1")
    e("s_and_b32 s41, s42, 1")
    e(f"v_lshrrev_b32 v{U}, 5, v{L}")
    e(f"v_lshlrev_b32 v{T}, 4, v{U}")
    e("s_lshl_b32 s46, s40, 10")
    e("s_lshl_b32 s47, s58, 7")
    e("s_add_u32 s46, s46, s47")
    e("s_lshl_b32 s47, s41, 6")
    e("s_add_u32 s47, s46, s47")
    e("s_mov_b32 s50, 0x55555555")
    e("s_mov_b32 s51, 0x55555555")
    e("s_mov_b64 exec, s[50:51]")
    for s in range(2):
        e(f"buffer_load_dwordx4 v[{GBF+4*s}:{GBF+4*s+3}], v{T}, s[24:27], s47 offen offset:{32*s}")
    e("s_not_b64 exec, exec")
    for s in range(2):
        e(f"buffer_load_dwordx4 v[{GBF+4*s}:{GBF+4*s+3}], v{T}, s[28:31], s47 offen offset:{32*s}")
    e("s_mov_b64 exec, -1")
    srd(32, 56, WS_BYTES)
    srd(60, 14, 256)
    e("v_mov_b32 v7, 0")
    e("s_cmp_lg_u32 s2, 0")
    e("s_cbranch_scc1 L_nononce")
    e("s_memrealtime s[54:55]")
    e("s_waitcnt lgkmcnt(0)")
    e("s_or_b32 s54, s54, 1")
    e(f"v_mov_b32 v{PL}, s54")
    e("s_mov_b64 exec, 1")
    e(f"buffer_store_dword v{PL}, v7, s[60:63], 0 offen sc0 sc1")
    e("s_mov_b64 exec, -1")
    g.lab("L_nononce")
    def nonce_issue():
        e(f"buffer_load_dword v{PL}, v7, s[60:63], 0 offen sc0 sc1")
    BR = 72
    e(f"v_bfe_u32 v{U+1}, v{L}, 2, 2")
    e(f"v_lshl_add_u32 v{U+2}, v{U}, 3, v{U+1}")
    e(f"v_lshlrev_b32 v{U+2}, 8, v{U+2}")
    e(f"v_bfe_u32 v{U+3}, v{L}, 4, 1")
    e(f"v_lshl_add_u32 v{U+2}, v{U+3}, 5, v{U+2}")
    e(f"v_and_b32 v{U+3}, 3, v{L}")
    e(f"v_lshl_add_u32 v{U+2}, v{U+3}, 3, v{U+2}")
    e("s_lshl_b32 s46, s40, 14")
    e("s_lshl_b32 s47, s41, 13")
    e("s_add_u32 s46, s46, s47")
    e(f"v_add_u32 v{U+2}, s46, v{U+2}")
    for k in range(4):
        e(f"v_xor_b32 v{U+3}, {k}, v{U+1}")
        e(f"v_lshl_add_u32 v{BR+k}, v{U+3}, 6, v{U+2}")
    for r in range(64):
        e(f"v_accvgpr_write_b32 a{r}, 0")
    e(f"v_and_b32 v{U+1}, 31, v{L}")
    e(f"v_lshlrev_b32 v{U+2}, 9, v{U+1}")
    e(f"v_lshl_add_u32 v{U+2}, v{U}, 4, v{U+2}")
    e("s_lshl_b32 s46, s37, 5")
    e("s_lshl_b32 s47, s40, 4")
    e("s_add_u32 s46, s46, s47")
    e("s_lshl_b32 s47, s58, 1")
    e("s_add_u32 s46, s46, s47")
    e("s_add_u32 s46, s46, s41")
    e("s_lshl_b32 s46, s46, 10")
    e(f"s_add_u32 s59, s46, {WS_S}")
    e("s_barrier")
    e("s_barrier")
    for s in range(2):
        for k in range(4):
            for h in range(2):
                e(f"ds_read_b64_tr_b16 v[{8+16*s+4*k+2*h}:{9+16*s+4*k+2*h}], v{BR+k} offset:{s*4096 + h*1024}")
    e("s_waitcnt vmcnt(0) lgkmcnt(0)")
    for s in range(2):
        for k in range(4):
            e(f"v_mfma_f32_32x32x16_bf16 a[{16*k}:{16*k+15}], v[{8+16*s+4*k}:{11+16*s+4*k}], v[{GBF+4*s}:{GBF+4*s+3}], a[{16*k}:{16*k+15}]")
    e("s_nop 7"); e("s_nop 7")
    e(f"v_cmp_gt_u32 vcc, 2, v{U+1}")
    e("s_and_saveexec_b64 s[50:51], vcc")
    for k in range(4):
        for q in range(4):
            e(f"buffer_store_dwordx4 a[{16*k+4*q}:{16*k+4*q+3}], v{U+2}, s[32:35], s59 offen offset:{k*128+q*32} sc0 sc1")
    e("s_mov_b64 exec, -1")
    nonce_issue()
    e("s_barrier")
    e("s_barrier")
    e("s_mov_b32 s52, 3000")
    g.lab("L_nonce")
    e("s_waitcnt vmcnt(0)")
    e(f"v_readfirstlane_b32 s54, v{PL}")
    e("s_cmp_lg_u32 s54, 0")
    e("s_cbranch_scc1 L_gotnonce")
    e("s_cmp_eq_u32 s52, 0")
    e("s_cbranch_scc1 L_noflag")
    e("s_sub_u32 s52, s52, 1")
    nonce_issue()
    e("s_branch L_nonce")
    g.lab("L_gotnonce")
    e("s_lshl_b32 s46, s36, 3")
    e("s_add_u32 s46, s46, s37")
    e("s_lshl_b32 s46, s46, 7")
    e(f"s_add_u32 s46, s46, {WS_F}")
    e(f"v_mov_b32 v{U}, s46")
    e("s_mov_b64 exec, 1")
    e(f"buffer_store_dword v{PL}, v{U}, s[32:35], 0 offen sc0 sc1")
    e("s_mov_b64 exec, -1")
    g.lab("L_noflag")

    def row_final(S1, S2, D):
        mean, var, t1 = S1, S2, D + 3
        e(f"v_mul_f32 v{mean}, 0x3a800000, v{mean}")
        e(f"v_mul_f32 v{var}, 0x3a800000, v{var}")
        e(f"v_fma_f32 v{var}, -v{mean}, v{mean}, v{var}")
        e(f"v_max_f32 v{var}, 0, v{var}")
        e(f"v_cvt_pk_bf16_f32 v{t1}, v{mean}, v{var}")
        e(f"v_lshlrev_b32 v{D}, 16, v{t1}")
        e(f"v_and_b32 v{var}, 0xffff0000, v{t1}")
        e(f"v_add_f32 v{var}, 0x3727c5ac, v{var}")
        e(f"v_cvt_pk_bf16_f32 v{t1}, v{var}, v{var}")
        e(f"v_lshlrev_b32 v{var}, 16, v{t1}")
        e(f"v_sqrt_f32 v{var}, v{var}")
        e("s_nop 0")
        e(f"v_cvt_pk_bf16_f32 v{t1}, v{var}, v{var}")
        e(f"v_lshlrev_b32 v{D+1}, 16, v{t1}")
        e(f"v_rcp_f32 v{D+2}, v{D+1}")
        e("s_nop 0")
    for j in range(3, 8):
        e("s_barrier")
    e("s_barrier")
    e("s_endpgm")

    g.lab("L_tail")
    e("s_mov_b32 s53, 1")
    e(f"s_mov_b32 s52, {0 if force_fb==1 else 40000}")
    def tick(name):
        e("s_cmp_eq_u32 s53, 0")
        e(f"s_cbranch_scc1 {name}")
        e("s_sub_u32 s53, s53, 1")
        e("s_barrier")
        g.lab(name)
    g.lab("L_poll")
    e("s_waitcnt vmcnt(0)")
    if force_fb == 2: tick("L_t0")
    e(f"v_readfirstlane_b32 s54, v{PN}")
    e("s_mov_b64 exec, s[50:51]")
    e(f"v_cmp_ne_u32 vcc, v{PN}, v{PL}")
    e("s_mov_b64 exec, -1")
    e("s_cmp_eq_u32 s54, 0")
    e("s_cbranch_scc1 L_retry")
    if force_fb != 1:
        e("s_cbranch_vccz L_gather")
    g.lab("L_retry")
    tick("L_t1")
    e("s_cmp_eq_u32 s52, 0")
    e("s_cbranch_scc1 L_fallback")
    e("s_sub_u32 s52, s52, 1")
    tail_poll_issue()
    e("s_branch L_poll")
    g.lab("L_gather")
    e(f"v_lshlrev_b32 v{U}, 4, v{L}")
    e("s_mov_b32 s46, s64")
    for j in range(16):
        if j % 4 == 0 and j: e("s_add_u32 s46, s46, 4096")
        e(f"buffer_load_dwordx4 v[{D0+4*j}:{D0+3+4*j}], v{U}, s[32:35], s46 offen offset:{(j%4)*1024} sc0 sc1")
    tick("L_t2")
    e("s_waitcnt vmcnt(0)")
    for r in range(4): e(f"v_add_f32 v{16+r}, v{D0+r}, v{D0+4+r}")
    for j in range(2, 16):
        for r in range(4): e(f"v_add_f32 v{16+r}, v{16+r}, v{D0+4*j+r}")
    e("s_cmp_lg_u32 s40, 0")
    e("s_cbranch_scc1 L_wr_s")
    row_final(16, 17, 8)
    row_final(18, 19, 12)
    g.lab("L_wr_row")
    e(f"v_lshlrev_b32 v{U+1}, 5, v{L}")
    e(f"v_add_u32 v{U+1}, {ROWP}, v{U+1}")
    e(f"ds_write_b128 v{U+1}, v[8:11]")
    e(f"ds_write_b128 v{U+1}, v[12:15] offset:16")
    e("s_branch L_tdone")
    g.lab("L_wr_s")
    e(f"v_lshrrev_b32 v{U+2}, 5, v{L}")
    e(f"v_and_b32 v{U+1}, 31, v{L}")
    e(f"v_lshlrev_b32 v{U+1}, 4, v{U+1}")
    e(f"v_lshl_add_u32 v{U+1}, v{U+2}, 10, v{U+1}")
    e("s_lshl_b32 s46, s41, 9")
    e(f"s_add_u32 s46, s46, {SARR}")
    e(f"v_add_u32 v{U+1}, s46, v{U+1}")
    e(f"ds_write_b128 v{U+1}, v[16:19]")
    g.lab("L_tdone")
    e("s_waitcnt lgkmcnt(0)")
    e("s_barrier")
    e("s_endpgm")

    g.lab("L_fallback")
    srd(24, 6, 2048); srd(28, 8, 2048)
    e("s_cmp_lg_u32 s40, 0")
    e("s_cbranch_scc1 L_fb_s")
    e("s_mov_b32 s55, 0x3f803f80")
    for a in range(2):
        e(f"v_lshlrev_b32 v{U}, 12, v{L}")
        e("s_lshl_b32 s46, s36, 18")
        e(f"s_add_u32 s46, s46, {a << 11}")
        e("v_mov_b32 v30, 0"); e("v_mov_b32 v31, 0")
        e("s_mov_b32 s52, 128")
        g.lab(f"L_fb1_{a}")
        e(f"buffer_load_dwordx4 v[24:27], v{U}, s[16:19], s46 offen")
        e("s_waitcnt vmcnt(0)")
        for r in range(4):
            e(f"v_dot2_f32_bf16 v30, v{24+r}, s55, v30")
            e(f"v_dot2_f32_bf16 v31, v{24+r}, v{24+r}, v31")
        e("s_add_u32 s46, s46, 16")
        e("s_sub_u32 s52, s52, 1")
        e("s_cmp_lg_u32 s52, 0")
        e(f"s_cbranch_scc1 L_fb1_{a}")
        e("s_nop 2")
        row_final(30, 31, 8 + 4*a)
    e("s_branch L_wr_row")
    g.lab("L_fb_s")
    e(f"v_cmp_lt_u32 vcc, 31, v{L}")
    e("s_mov_b64 s[50:51], vcc")
    e(f"v_and_b32 v{U}, 31, v{L}")
    e(f"v_lshlrev_b32 v{U}, 3, v{U}")
    e("s_lshl_b32 s46, s37, 8")
    e("s_lshl_b32 s47, s41, 20")
    e("s_add_u32 s46, s46, s47")
    e("s_lshl_b32 s47, s41, 10")
    e(f"v_mov_b32 v{U+1}, 0")
    for r in range(4): e(f"v_mov_b32 v{16+r}, 0")
    e("s_mov_b32 s52, 512")
    g.lab("L_fb2")
    e(f"buffer_load_dwordx2 v[24:25], v{U}, s[20:23], s46 offen")
    e(f"buffer_load_ushort v26, v{U+1}, s[24:27], s47 offen")
    e(f"buffer_load_ushort v27, v{U+1}, s[28:31], s47 offen")
    e("s_waitcnt vmcnt(0)")
    e("v_cndmask_b32 v26, v26, v27, s[50:51]")
    e("v_lshlrev_b32 v26, 16, v26")
    e("v_lshlrev_b32 v28, 16, v24"); e("v_and_b32 v29, 0xffff0000, v24")
    e("v_lshlrev_b32 v30, 16, v25"); e("v_and_b32 v31, 0xffff0000, v25")
    for r in range(4): e(f"v_fmac_f32 v{16+r}, v{28+r}, v26")
    e("s_add_u32 s46, s46, 2048")
    e("s_add_u32 s47, s47, 2")
    e("s_sub_u32 s52, s52, 1")
    e("s_cmp_lg_u32 s52, 0")
    e("s_cbranch_scc1 L_fb2")
    e("s_branch L_wr_s")
    g.lab("L_end")
    e("s_endpgm")

    out = HDR
    out += "; Override launch geometry by editing the next line.\n"
    out += f"; @launch grid=(256,1,1) block=(768,1,1) lds={LDS_BYTES}\n"
    out += '.amdgcn_target "amdgcn-amd-amdhsa--gfx950"\n.text\n'
    out += f".globl {NAME}\n.p2align 8\n.type {NAME},@function\n{NAME}:\n"
    out += "\n".join(x for x in g.l if x is not None and x.strip()) + "\n"
    out += f""".section .rodata,"a"
.p2align 6
.amdhsa_kernel {NAME}
  .amdhsa_next_free_vgpr {NV+NA}
  .amdhsa_next_free_sgpr 96
  .amdhsa_accum_offset {NV}
  .amdhsa_group_segment_fixed_size 0
  .amdhsa_kernarg_size 56
  .amdhsa_user_sgpr_count 2
  .amdhsa_user_sgpr_kernarg_segment_ptr 1
  .amdhsa_system_sgpr_workgroup_id_x 1
.end_amdhsa_kernel
"""
    return out

if __name__ == '__main__':
    kw = {}
    for a in sys.argv[2:]:
        k, v = a.split('='); kw[k] = int(v)
    open(sys.argv[1], 'w').write(gen(**kw))
```

```python
import sys

NAME = "standalone__layernorm_linear__sampling_kernel"
HDR = open('standalone__layernorm_linear__sampling.s.ref').read().split('; Override launch')[0]

A_BASE = 98304
LDS_BYTES = 163840
ROWP = A_BASE
SARR = A_BASE + 2048
PIVX = A_BASE + 8192
WS_S = 1 << 20
WS_F = (1 << 20) + (1 << 19)
WS_BYTES = 2 << 20

NV, NA = 104, 64
V_LANE, V_PIV, V_GOFF = 1, 2, 3
V_ARD, V_BRD, V_BRD2, V_G, V_RAW, V_VF, V_T, V_X, V_ACC = 4, 8, 12, 16, 20, 40, 48, 64, 72
A_BF = 32

class G:
    def __init__(self):
        self.l = []; self.nvm = 0
    def e(self, s): self.l.append("    " + s)
    def lab(self, s): self.l.append(s + ":")
    def c(self, s): self.l.append("    ; " + s)
    def vm(self, s):
        self.e(s); self.nvm += 1; return self.nvm
    def wait_vm(self, idx, extra=""):
        n = self.nvm - idx
        assert 0 <= n <= 63, n
        self.e(f"s_waitcnt vmcnt({n}){extra}")

def gen(stamps=0, force_fb=0, pk=1, early=0, ost=1, fl=0, fast=1, est=0, pr=0, sched=0, direct=0, wide=0, hf=0):
    g = G(); e = g.e
    nst = [0]
    def stamp():
        if stamps:
            e(f"s_{'memtime' if stamps==2 else 'memrealtime'} s[{80+2*nst[0]}:{81+2*nst[0]}]"); nst[0] += 1
    def srd(d, b, n):
        e(f"s_mov_b32 s{d}, s{b}")
        e(f"s_and_b32 s{d+1}, s{b+1}, 0xffff")
        e(f"s_mov_b32 s{d+2}, {n}")
        e(f"s_mov_b32 s{d+3}, 0x00020000")
    L = V_LANE; T = V_T
    e("s_cmp_ge_u32 s2, 256")
    e("s_cbranch_scc1 L_end")
    stamp()
    e("s_load_dwordx8 s[4:11], s[0:1], 0")
    e("s_load_dwordx4 s[12:15], s[0:1], 32")
    e("s_load_dwordx2 s[56:57], s[0:1], 48")
    e(f"v_lshrrev_b32 v{T}, 6, v0")
    e(f"v_and_b32 v{L}, 63, v0")
    e(f"v_readfirstlane_b32 s39, v{T}")
    if hf:
        e("s_nop 2")
        e("s_add_u32 s39, s39, 8")
        e("s_cmp_ge_u32 s39, 12")
        e("s_cselect_b32 s46, 12, 0")
        e("s_sub_u32 s39, s39, s46")
    e("s_and_b32 s46, s2, 7")
    e("s_lshr_b32 s47, s2, 3")
    e("s_lshr_b32 s38, s47, 3")
    e("s_lshl_b32 s36, s46, 2")
    e("s_add_u32 s36, s36, s38")
    e("s_and_b32 s37, s47, 7")
    e("s_lshl_b32 s58, s38, 1")
    e("s_add_u32 s58, s58, s37")
    e("s_and_b32 s48, s46, 1")
    e("s_add_u32 s58, s58, s48")
    e("s_and_b32 s58, s58, 7")
    e("s_lshr_b32 s42, s46, 1")
    e("s_cmp_ge_u32 s39, 8")
    e("s_cbranch_scc1 L_helpers")

    e("s_and_b32 s40, s39, 3")
    e("s_lshr_b32 s41, s39, 2")
    e("s_lshl_b32 s44, s39, 13")
    e(f"s_add_u32 s44, s44, {A_BASE}")
    e(f"v_bfe_u32 v{T+2}, v{L}, 2, 2")
    e(f"v_lshlrev_b32 v{T+2}, 5, v{T+2}")
    e(f"v_lshrrev_b32 v{T+1}, 5, v{L}")
    e(f"v_lshl_add_u32 v{T+2}, v{T+1}, 4, v{T+2}")
    e(f"v_and_b32 v{T+3}, 3, v{L}")
    e(f"v_lshl_add_u32 v{V_GOFF}, v{T+3}, 2, v{T+2}")
    e("s_lshl_b32 s45, s41, 10")
    e("s_waitcnt lgkmcnt(0)")
    srd(24, 6, 2048)
    GP = T + 8
    for c in range(8):
        e(f"s_add_u32 s46, s58, {c}")
        e("s_and_b32 s46, s46, 7")
        e("s_lshl_b32 s46, s46, 7")
        e("s_add_u32 s46, s46, s45")
        g.vm(f"buffer_load_dword v{GP+c}, v{V_GOFF}, s[24:27], s46 offen")
    def loadG(c):
        e(f"v_lshlrev_b32 v{V_G+2*(c&1)}, 16, v{GP+c}")
        e(f"v_and_b32 v{V_G+2*(c&1)+1}, 0xffff0000, v{GP+c}")
    srd(32, 12, 8388608)
    srd(28, 56, WS_BYTES)
    e(f"v_and_b32 v{T}, 31, v{L}")
    e(f"v_bfe_u32 v{T+2}, v{L}, 1, 3")
    e(f"v_xor_b32 v{T+2}, v{T+2}, v{T+1}")
    e(f"v_lshlrev_b32 v{T+3}, 7, v{T}")
    e(f"v_lshl_add_u32 v{T+3}, v{T+2}, 4, v{T+3}")
    e(f"v_add_u32 v{V_ARD}, s44, v{T+3}")
    for s in range(1, 4):
        e(f"v_xor_b32 v{V_ARD+s}, {32*s}, v{V_ARD}")
    e(f"v_bfe_u32 v{T+2}, v{L}, 2, 2")
    e(f"v_lshl_add_u32 v{T+3}, v{T+1}, 3, v{T+2}")
    e(f"v_lshlrev_b32 v{T+3}, 8, v{T+3}")
    e(f"v_bfe_u32 v{T+4}, v{L}, 4, 1")
    e(f"v_lshl_add_u32 v{T+3}, v{T+4}, 5, v{T+3}")
    e(f"v_and_b32 v{T+4}, 3, v{L}")
    e(f"v_lshl_add_u32 v{T+3}, v{T+4}, 3, v{T+3}")
    e("s_lshl_b32 s46, s41, 14")
    e(f"v_add_u32 v{T+3}, s46, v{T+3}")
    e("s_lshl_b32 s49, s41, 1")
    for k in range(4):
        e(f"s_xor_b32 s46, s49, {k}")
        e(f"v_xor_b32 v{T+4}, s46, v{T+2}")
        e(f"v_lshl_add_u32 v{V_BRD+k}, v{T+4}, 6, v{T+3}")
        e(f"v_add_u32 v{V_BRD2+k}, 0x10000, v{V_BRD+k}")
    for r in range(32):
        e(f"v_accvgpr_write_b32 a{r}, 0")
        e(f"v_mov_b32 v{V_ACC+r}, 0")
    e(f"v_lshlrev_b32 v{V_X}, 3, v{T}")
    e("s_lshl_b32 s46, s36, 14")
    e("s_lshl_b32 s47, s41, 3")
    e("s_add_u32 s47, s47, s58")
    e("s_lshl_b32 s47, s47, 10")
    e("s_add_u32 s46, s46, s47")
    e("s_lshl_b32 s47, s40, 8")
    e("s_add_u32 s59, s46, s47")
    e(f"v_mov_b32 v{T}, 0x3f803f80")
    for k in range(4):
        e(f"v_mov_b32 v{T+1+k}, 0")

    rs = lambda t: V_RAW + 4 * (t % 5)
    def readA1(t):
        c, s = t >> 2, t & 3
        e(f"ds_read_b128 v[{rs(t)}:{rs(t)+3}], v{V_ARD+s} offset:{(c&1)*4096}")

    e("s_barrier")
    stamp()
    for t in range(4): readA1(t)
    e("s_waitcnt lgkmcnt(0)")
    for r in range(16):
        e(f"v_dot2_f32_bf16 v{T+1+(r&1)}, v{V_RAW+r}, v{T}, v{T+1+(r&1)}")
        e(f"v_dot2_f32_bf16 v{T+3+(r&1)}, v{V_RAW+r}, v{V_RAW+r}, v{T+3+(r&1)}")
    e("s_waitcnt vmcnt(0)")
    loadG(0); loadG(1)
    e(f"v_add_f32 v{T+1}, v{T+1}, v{T+2}")
    e(f"v_add_f32 v{T+2}, v{T+3}, v{T+4}")
    e(f"v_mov_b32 v{T+3}, v{T+1}")
    e(f"v_mov_b32 v{T+4}, v{T+2}")
    e("s_nop 1")
    e(f"v_permlane32_swap_b32 v{T+3}, v{T+1}")
    e(f"v_permlane32_swap_b32 v{T+4}, v{T+2}")
    e("s_nop 1")
    e(f"v_add_f32 v{V_X+2}, v{T+1}, v{T+3}")
    e(f"v_add_f32 v{V_X+3}, v{T+2}, v{T+4}")
    e(f"v_mul_f32 v{V_PIV}, 0x3c800000, v{V_X+2}")
    e("s_mov_b32 exec_hi, 0")
    e(f"buffer_store_dwordx2 v[{V_X+2}:{V_X+3}], v{V_X}, s[28:31], s59 offen sc0 sc1")
    e("s_mov_b64 exec, -1")

    def norm_ops(t, nopiv=False):
        c, s = t >> 2, t & 3
        raw = rs(t)
        vf = V_VF + (t & 1) * 4
        glo = V_G + 2 * (c & 1)
        groups = []
        for pp in range(2):
            o = []
            ps = (2 * pp, 2 * pp + 1)
            for p in ps:
                t0 = T + 2 * p
                o.append(f"v_lshlrev_b32 v{t0}, 16, v{raw+p}")
                o.append(f"v_and_b32 v{t0+1}, 0xffff0000, v{raw+p}")
            for p in ps:
                t0 = T + 2 * p
                if nopiv: continue
                o.append(f"v_sub_f32 v{t0}, v{t0}, v{V_PIV}")
                o.append(f"v_sub_f32 v{t0+1}, v{t0+1}, v{V_PIV}")
            for p in ps:
                t0 = T + 2 * p
                o.append(f"v_mul_f32_dpp v{t0}, v{glo}, v{t0} row_newbcast:{4*s+p} row_mask:0xf bank_mask:0xf")
                o.append(f"v_mul_f32_dpp v{t0+1}, v{glo+1}, v{t0+1} row_newbcast:{4*s+p} row_mask:0xf bank_mask:0xf")
            for p in ps:
                t0 = T + 2 * p
                o.append(f"v_cvt_pk_bf16_f32 v{vf+p}, v{t0}, v{t0+1}")
            hl = len(o) // 2
            groups.append(o[:hl]); groups.append(o[hl:])
        return groups

    def readB(t):
        c, s = t >> 2, t & 3
        slot = c % 3
        buf = A_BF + (t & 1) * 16
        for k in range(4):
            for h in range(2):
                if slot < 2:
                    e(f"ds_read_b64_tr_b16 a[{buf+4*k+2*h}:{buf+4*k+2*h+1}], v{V_BRD+k} offset:{slot*32768 + s*4096 + h*1024}")
                else:
                    e(f"ds_read_b64_tr_b16 a[{buf+4*k+2*h}:{buf+4*k+2*h+1}], v{V_BRD2+k} offset:{s*4096 + h*1024}")

    def accreg(k):
        return f"v[{V_ACC+16*k}:{V_ACC+16*k+15}]" if k < 2 else f"a[{16*(k-2)}:{16*(k-2)+15}]"
    EA = 12
    def mainloop(nopiv):
        for t in range(-1, 32):
            g.c(f"---- step {t}")
            loadG_next = None
            if t == 7: e("s_waitcnt vmcnt(0) lgkmcnt(0)")
            elif t >= 0: e("s_waitcnt lgkmcnt(0)")
            if (t + 1) % 4 == 0 and t + 1 <= 31:
                j = (t + 1) // 4
                e("s_barrier")
                if 1 <= j <= 6: loadG_next = j + 1
            if t in (-1, 7, 15, 23) and not est: stamp()
            if pr and t == pr - 2:
                tg = "f" if nopiv else "s"
                e("s_cmp_lt_u32 s39, 4"); e(f"s_cbranch_scc1 L_np{tg}"); e("s_setprio 1"); g.lab(f"L_np{tg}")
            groups = norm_ops(t + 1, nopiv) if t + 1 <= 31 else [[], [], [], []]
            buf = A_BF + (t & 1) * 16
            vf = V_VF + (t & 1) * 4
            def mfma(k):
                if t >= 0:
                    e(f"v_mfma_f32_32x32x16_bf16 {accreg(k)}, a[{buf+4*k}:{buf+4*k+3}], v[{vf}:{vf+3}], {accreg(k)}")
            ok = (2, 3, 0, 1) if t == 31 else (0, 1, 2, 3)
            mfma(ok[0])
            if t + 5 <= 31: readA1(t + 5)
            if t + 1 <= 31: readB(t + 1)
            allv = groups[0] + groups[1] + groups[2] + groups[3]
            if sched == 0:
                n3 = (len(allv) + 2) // 3
                parts = [allv[:n3], allv[n3:2*n3], allv[2*n3:], []]
            elif sched == 1:
                parts = groups
            elif sched == 2:
                n4 = len(allv) // 4
                parts = [allv[:n4-1], allv[n4-1:2*n4+1], allv[2*n4+1:], []]
            for o in parts[0]: e(o)
            mfma(ok[1])
            for o in parts[1]: e(o)
            mfma(ok[2])
            for o in parts[2]: e(o)
            mfma(ok[3])
            for o in parts[3]: e(o)
            if sched == 1 and t >= 0: e("s_nop 0")
            if t == 24:
                e(f"v_and_b32 v{T}, 31, v{L}")
                e(f"v_lshrrev_b32 v{T+1}, 5, v{L}")
                e("s_lshl_b32 s46, s40, 9")
                e(f"s_add_u32 s46, s46, {ROWP}")
                e(f"v_lshl_add_u32 v{EA+1}, v{T}, 4, s46")
                e("s_lshl_b32 s46, s40, 7")
                e(f"s_add_u32 s46, s46, {PIVX}")
                e(f"v_lshl_add_u32 v{EA}, v{T}, 2, s46")
                e("s_lshl_b32 s47, s41, 9")
                e(f"v_add_u32 v{EA+3}, s47, v{EA}")
                e(f"v_lshl_add_u32 v{EA}, v{T+1}, 9, v{EA}")
                e("s_lshl_b32 s46, s41, 8")
                e(f"s_add_u32 s46, s46, {SARR}")
                e(f"v_lshl_add_u32 v{EA+2}, v{T}, 2, s46")
                e(f"v_lshl_add_u32 v{EA+2}, v{T+1}, 9, v{EA+2}")
            if t == 28:
                e(f"ds_write_b32 v{EA+3}, v{V_PIV}")
            if loadG_next is not None: loadG(loadG_next)
            if t < 0: e("s_nop 1")


    if fast:
        e(f"v_mul_f32 v{T}, v{V_X+2}, v{V_X+2}")
        e(f"v_mul_f32 v{T+1}, 0x42000000, v{V_X+3}")
        e(f"v_cmp_nle_f32 vcc, v{T}, v{T+1}")
        e("s_cbranch_vccnz L_slowloop" if fast == 1 else "s_branch L_slowloop")
        e(f"v_mov_b32 v{V_PIV}, 0")
        n0 = nst[0]
        mainloop(True)
        e("s_branch L_epi")
        g.lab("L_slowloop")
        nst[0] = n0
        mainloop(False)
        g.lab("L_epi")
    else:
        mainloop(False)
    g.c("---- epilogue")
    stamp()
    e(f"v_lshlrev_b32 v{T+7}, 4, v{L}")
    e("s_lshl_b32 s46, s40, 13")
    e("s_lshl_b32 s47, s41, 16")
    e("s_add_u32 s46, s46, s47")
    e(f"v_add_u32 v{T+8}, s46, v{T+7}")
    e("s_xor_b32 s46, s46, 0x10000")
    e(f"v_add_u32 v{T+9}, s46, v{T+7}")
    e(f"v_and_b32 v{T+4}, 31, v{L}")
    e(f"v_lshrrev_b32 v{T+6}, 5, v{L}")
    e("s_nop 1")
    for q in range(8):
        e(f"ds_write_b128 v{T+8}, a[{4*q}:{3+4*q}] offset:{q*1024}")
    if not wide:
        e(f"v_and_b32 v{T+12}, 7, v{T+4}")
        e(f"v_xor_b32 v{T+12}, v{T+12}, v{T+6}")
        e(f"v_lshlrev_b32 v{T+12}, 4, v{T+12}")
        e(f"v_lshl_add_u32 v{T+12}, v{T+4}, 7, v{T+12}")
        e("s_add_u32 s46, s44, 4096")
        e(f"v_add_u32 v{T+12}, s46, v{T+12}")
        e(f"v_lshrrev_b32 v{T+13}, 3, v{L}")
        e(f"v_and_b32 v{T+14}, 7, v{L}")
        e(f"v_xor_b32 v{T+15}, v{T+14}, v{T+13}")
        e(f"v_lshlrev_b32 v{T+15}, 4, v{T+15}")
        e(f"v_lshl_add_u32 v{T+15}, v{T+13}, 7, v{T+15}")
        e(f"v_add_u32 v{T+15}, s46, v{T+15}")
        e(f"v_lshlrev_b32 v{T+14}, 4, v{T+14}")
        e(f"v_lshl_add_u32 v{T+13}, v{T+13}, 11, v{T+14}")
    else:
        e("s_lshl_b32 s46, s40, 13")
        e(f"s_add_u32 s46, s46, {A_BASE + 32768}")
        e(f"v_and_b32 v{T+12}, 7, v{T+4}")
        e(f"v_xor_b32 v{T+12}, v{T+12}, v{T+6}")
        e(f"v_lshlrev_b32 v{T+12}, 4, v{T+12}")
        e(f"v_lshl_add_u32 v{T+12}, v{T+4}, 8, v{T+12}")
        e("s_lshl_b32 s48, s41, 7")
        e("s_add_u32 s48, s48, s46")
        e(f"v_add_u32 v{T+12}, s48, v{T+12}")
        e(f"v_lshrrev_b32 v{T+13}, 4, v{L}")
        e(f"v_and_b32 v{T+14}, 15, v{L}")
        e(f"v_xor_b32 v{T+15}, v{T+14}, v{T+13}")
        e(f"v_lshlrev_b32 v{T+15}, 4, v{T+15}")
        e(f"v_lshl_add_u32 v{T+15}, v{T+13}, 8, v{T+15}")
        e("s_lshl_b32 s48, s41, 12")
        e("s_add_u32 s48, s48, s46")
        e(f"v_add_u32 v{T+15}, s48, v{T+15}")
        e(f"v_xor_b32 v{T+11}, 64, v{T+15}")
        e(f"v_lshlrev_b32 v{T+14}, 4, v{T+14}")
        e(f"v_lshl_add_u32 v{T+13}, v{T+13}, 11, v{T+14}")
    for z in range(1, 4):
        e(f"v_xor_b32 v{T+z}, {z*32}, v{T+12}")
    e(f"v_lshlrev_b32 v{T+10}, 11, v{T+4}")
    e(f"v_lshl_add_u32 v{T+10}, v{T+6}, 4, v{T+10}")
    e("s_lshl_b32 s47, s36, 18")
    e("s_lshl_b32 s48, s37, 8")
    e("s_add_u32 s47, s47, s48")
    e("s_lshl_b32 s48, s41, 15" if wide else "s_lshl_b32 s48, s41, 7")
    e("s_add_u32 s47, s47, s48")
    e("s_lshl_b32 s48, s40, 16")
    e("s_add_u32 s47, s47, s48")
    e("s_waitcnt lgkmcnt(0)")
    if est: stamp()
    e("s_barrier")
    if est: stamp()
    P = 16
    RP = V_X; SV = V_X + 4; CC = 3
    e(f"ds_read_b32 v{CC}, v{EA}")
    e(f"ds_read_b128 v[{RP}:{RP+3}], v{EA+1}")
    for k in range(2):
        e(f"ds_read_b32 v{SV+2*k}, v{EA+2} offset:{k*128}")
        e(f"ds_read_b32 v{SV+2*k+1}, v{EA+2} offset:{k*128+1024}")
    for q in range(8):
        e(f"ds_read_b128 v[{P+4*q}:{P+3+4*q}], v{T+9} offset:{q*1024}")
    e("s_waitcnt lgkmcnt(8)")
    e(f"v_sub_f32 v{CC}, v{CC}, v{RP}")
    e(f"v_mov_b32 v{RP+3}, v{RP+2}")
    e("s_nop 0")
    for k in range(2):
        e(f"v_mfma_f32_32x32x2_f32 {accreg(k)}, v{SV+2*k+1}, v{RP+1}, {accreg(k)}")
        e(f"v_mfma_f32_32x32x2_f32 {accreg(k)}, v{SV+2*k}, v{CC}, {accreg(k)}")
    e("s_nop 15")
    e("s_nop 2")
    e("s_waitcnt lgkmcnt(0)")
    if est: stamp()
    O = 4
    for k in range(2):
        for q in range(4):
            r0 = V_ACC + 16*k + 4*q
            p0 = P + 16*k + 4*q
            if pk:
                for j in (0, 2):
                    e(f"v_pk_add_f32 v[{p0+j}:{p0+j+1}], v[{p0+j}:{p0+j+1}], v[{r0+j}:{r0+j+1}]")
                for j in (0, 2):
                    e(f"v_pk_mul_f32 v[{p0+j}:{p0+j+1}], v[{p0+j}:{p0+j+1}], v[{RP+2}:{RP+3}]")
            else:
                for j in range(4): e(f"v_add_f32 v{p0+j}, v{p0+j}, v{r0+j}")
                for j in range(4): e(f"v_mul_f32 v{p0+j}, v{p0+j}, v{RP+2}")
            oo = O + (q & 1) * 2 + (q >> 1) * 4
            e(f"v_cvt_pk_bf16_f32 v{oo}, v{p0}, v{p0+1}")
            e(f"v_cvt_pk_bf16_f32 v{oo+1}, v{p0+2}, v{p0+3}")
            if q & 1:
                o4 = O + (q >> 1) * 4
                z = 2*k + (q >> 1)
                e("s_nop 1")
                e(f"v_permlane32_swap_b32 v{o4}, v{o4+2}")
                e(f"v_permlane32_swap_b32 v{o4+1}, v{o4+3}")
                e("s_nop 1")
                if direct:
                    e(f"buffer_store_dwordx4 v[{o4}:{o4+3}], v{T+10}, s[32:35], s47 offen offset:{z*32} sc1")
                else:
                    e(f"ds_write_b128 v{T+12 if z == 0 else T+z}, v[{o4}:{o4+3}]")
    e("s_waitcnt lgkmcnt(0)")
    if est: stamp(); e("s_waitcnt lgkmcnt(0)")
    if wide: e("s_barrier")
    for it in range(4 if not direct else 0):
        e(f"ds_read_b128 v[{P+4*it}:{P+3+4*it}], v{T+11 if (wide and it & 1) else T+15} offset:{it*1024}")
    for it in range(4 if not direct else 0):
        e(f"s_waitcnt lgkmcnt({3-it})")
        if it: e(f"s_add_u32 s47, s47, {(4 if wide else 8)*2048}")
        e(f"buffer_store_dwordx4 v[{P+4*it}:{P+3+4*it}], v{T+13}, s[32:35], s47 offen" + ["", " sc1"][ost])
    if stamps:
        e("s_waitcnt vmcnt(0)")
        stamp()
        e("s_waitcnt lgkmcnt(0)")
        e("s_mov_b32 s30, 0x1000000")
        e("s_lshl_b32 s46, s2, 3")
        e("s_add_u32 s46, s46, s39")
        e("s_lshl_b32 s46, s46, 6")
        e("s_add_u32 s46, s46, 0x400000")
        e("v_mov_b32 v2, s46")
        for k in range(16):
            e(f"v_mov_b32 v{4+k}, s{80+k}")
        e(f"v_cmp_eq_u32 vcc, 0, v{L}")
        e("s_and_saveexec_b64 s[50:51], vcc")
        for k in range(4):
            e(f"buffer_store_dwordx4 v[{4+4*k}:{7+4*k}], v2, s[28:31], 0 offen offset:{16*k}")
        e("s_waitcnt vmcnt(0)")
    e("s_endpgm")

    g.lab("L_helpers")
    OA0, OA1, OB = 2, 3, 4
    e(f"v_lshrrev_b32 v{T}, 3, v{L}")
    e(f"v_lshlrev_b32 v{T}, 11, v{T}")
    e(f"v_and_b32 v{T+1}, 7, v{L}")
    e(f"v_lshrrev_b32 v{T+2}, 4, v{L}")
    e(f"v_xor_b32 v{T+1}, v{T+1}, v{T+2}")
    e(f"v_lshl_add_u32 v{OA0}, v{T+1}, 4, v{T}")
    e(f"v_xor_b32 v{OA1}, 64, v{OA0}")
    e(f"v_lshlrev_b32 v{T}, 11, v{T+2}")
    e(f"v_and_b32 v{T+1}, 15, v{L}")
    e(f"v_lshlrev_b32 v{T+3}, 2, v{T+2}")
    e(f"v_xor_b32 v{T+1}, v{T+1}, v{T+3}")
    e(f"v_lshl_add_u32 v{OB}, v{T+1}, 4, v{T}")
    e("s_lshl_b32 s43, s36, 18")
    e("s_lshl_b32 s45, s37, 8")
    e("s_waitcnt lgkmcnt(0)")
    srd(16, 4, 8388608)
    srd(20, 10, 2097152)
    e("s_cmp_eq_u32 s39, 11")
    e("s_cbranch_scc1 L_aux")
    e("s_cmp_eq_u32 s39, 10")
    e("s_cbranch_scc1 L_load2")
    e("s_sub_u32 s40, s39, 8")
    e("s_lshl_b32 s46, s40, 10")
    e("s_add_u32 s43, s43, s46")
    e("s_lshl_b32 s46, s40, 20")
    e("s_add_u32 s45, s45, s46")
    e("s_lshl_b32 s44, s40, 15")
    e(f"s_add_u32 s44, s44, {A_BASE}")
    e("s_lshl_b32 s49, s40, 14")

    def loader(kind):
        g.nvm = 0
        ids = {}
        def dmaA(c):
            if kind != 0: return
            e(f"s_add_u32 s47, s58, {c}")
            e("s_and_b32 s47, s47, 7")
            e("s_lshl_b32 s47, s47, 7")
            e("s_add_u32 s47, s47, s43")
            for i in range(4):
                for q in range(4):
                    e(f"s_add_u32 m0, s44, {i*8192 + (c&1)*4096 + q*1024}")
                    e(f"s_add_u32 s46, s47, {(32*i + 8*q)*2048}")
                    ids[('A', c)] = g.vm(f"buffer_load_dwordx4 v{OA0 if q%2==0 else OA1}, s[16:19], s46 offen lds")
        def dmaB(c):
            e(f"s_add_u32 s47, s58, {c}")
            e("s_and_b32 s47, s47, 7")
            e("s_lshl_b32 s47, s47, 17")
            e("s_add_u32 s47, s47, s45")
            if kind == 0:
                for q in range(8):
                    e(f"s_add_u32 m0, s49, {(c%3)*32768 + q*1024}")
                    e(f"s_add_u32 s46, s47, {(4*q)*2048}")
                    ids[('B', c)] = g.vm(f"buffer_load_dwordx4 v{OB}, s[20:23], s46 offen lds")
            else:
                for h in range(2):
                    for q in range(8, 16):
                        e(f"s_mov_b32 m0, {(c%3)*32768 + h*16384 + q*1024}")
                        e(f"s_add_u32 s46, s47, {(h*512 + 4*q)*2048}")
                        ids[('B', c)] = g.vm(f"buffer_load_dwordx4 v{OB}, s[20:23], s46 offen lds")
        def need(*keys):
            ks = [ids[k] for k in keys if k in ids]
            if ks: g.wait_vm(max(ks))
        dmaA(0); dmaB(0)
        if early == 1: dmaA(1); dmaB(1); dmaB(2)
        if early == 2: dmaA(1)
        need(('A', 0))
        e("s_barrier")
        if not early: dmaA(1); dmaB(1); dmaB(2)
        if early == 2: dmaB(1); dmaB(2)
        need(('B', 0), ('A', 1))
        e("s_barrier")
        dmaA(2)
        need(('B', 1), ('A', 2))
        e("s_barrier")
        dmaA(3); dmaB(3)
        need(('B', 2), ('A', 3))
        e("s_barrier")
        for j in range(2, 6):
            dmaA(j + 2); dmaB(j + 2)
            if j == 5:
                tail_setup()
                tail_poll_issue(); g.nvm += 2
            need(('B', j + 1), ('A', j + 2))
            e("s_barrier")
        e("s_branch L_tail")
    PA, PL, PN, U, D0 = 5, 6, 7, 92, 24
    def tail_setup():
        srd(32, 56, WS_BYTES)
        srd(60, 14, 256)
        e("s_sub_u32 s40, s39, 8")
        e("s_lshl_b32 s46, s36, 3")
        e(f"v_add_u32 v{PA}, s46, v{L}")
        e("s_mov_b64 s[50:51], 0xff")
        e("s_lshl_b32 s64, s36, 14")
        e("s_cmp_eq_u32 s40, 0")
        lbl = f"L_ts{len(g.l)}"
        e(f"s_cbranch_scc1 {lbl}")
        e("s_sub_u32 s41, s40, 1")
        e("s_lshl_b32 s46, s41, 4")
        e(f"v_add_u32 v{PA}, s46, v{L}")
        e(f"v_lshl_add_u32 v{PA}, v{PA}, 3, s37")
        e("s_mov_b64 s[50:51], 0xffff")
        e("s_lshl_b32 s64, s37, 15")
        e("s_lshl_b32 s46, s41, 14")
        e("s_add_u32 s64, s64, s46")
        e(f"s_add_u32 s64, s64, {WS_S}")
        g.lab(lbl)
        e(f"v_lshlrev_b32 v{PA}, 7, v{PA}")
        e(f"v_add_u32 v{PA}, {WS_F}, v{PA}")
        e(f"v_mov_b32 v{U+3}, 0")
    def tail_poll_issue():
        e(f"buffer_load_dword v{PN}, v{U+3}, s[60:63], 0 offen sc0 sc1")
        e("s_mov_b64 exec, s[50:51]")
        e(f"buffer_load_dword v{PL}, v{PA}, s[32:35], 0 offen sc0 sc1")
        e("s_mov_b64 exec, -1")
    loader(0)
    g.lab("L_load2")
    loader(1)

    g.lab("L_aux")
    g.nvm = 0
    PA, PL = 5, 6
    U = 92
    GBF = 96
    srd(24, 6, 2048); srd(28, 8, 2048)
    e("s_lshr_b32 s40, s42, 1")
    e("s_and_b32 s41, s42, 1")
    e(f"v_lshrrev_b32 v{U}, 5, v{L}")
    e(f"v_lshlrev_b32 v{T}, 4, v{U}")
    e("s_lshl_b32 s46, s40, 10")
    e("s_lshl_b32 s47, s58, 7")
    e("s_add_u32 s46, s46, s47")
    e("s_lshl_b32 s47, s41, 6")
    e("s_add_u32 s47, s46, s47")
    e("s_mov_b32 s50, 0x55555555")
    e("s_mov_b32 s51, 0x55555555")
    e("s_mov_b64 exec, s[50:51]")
    for s in range(2):
        e(f"buffer_load_dwordx4 v[{GBF+4*s}:{GBF+4*s+3}], v{T}, s[24:27], s47 offen offset:{32*s}")
    e("s_not_b64 exec, exec")
    for s in range(2):
        e(f"buffer_load_dwordx4 v[{GBF+4*s}:{GBF+4*s+3}], v{T}, s[28:31], s47 offen offset:{32*s}")
    e("s_mov_b64 exec, -1")
    srd(32, 56, WS_BYTES)
    srd(60, 14, 256)
    e("v_mov_b32 v7, 0")
    e("s_cmp_lg_u32 s2, 0")
    e("s_cbranch_scc1 L_nononce")
    e("s_memrealtime s[54:55]")
    e("s_waitcnt lgkmcnt(0)")
    e("s_or_b32 s54, s54, 1")
    e(f"v_mov_b32 v{PL}, s54")
    e("s_mov_b64 exec, 1")
    e(f"buffer_store_dword v{PL}, v7, s[60:63], 0 offen sc0 sc1")
    e("s_mov_b64 exec, -1")
    g.lab("L_nononce")
    def nonce_issue():
        e(f"buffer_load_dword v{PL}, v7, s[60:63], 0 offen sc0 sc1")
    BR = 72
    e(f"v_bfe_u32 v{U+1}, v{L}, 2, 2")
    e(f"v_lshl_add_u32 v{U+2}, v{U}, 3, v{U+1}")
    e(f"v_lshlrev_b32 v{U+2}, 8, v{U+2}")
    e(f"v_bfe_u32 v{U+3}, v{L}, 4, 1")
    e(f"v_lshl_add_u32 v{U+2}, v{U+3}, 5, v{U+2}")
    e(f"v_and_b32 v{U+3}, 3, v{L}")
    e(f"v_lshl_add_u32 v{U+2}, v{U+3}, 3, v{U+2}")
    e("s_lshl_b32 s46, s40, 14")
    e("s_lshl_b32 s47, s41, 13")
    e("s_add_u32 s46, s46, s47")
    e(f"v_add_u32 v{U+2}, s46, v{U+2}")
    for k in range(4):
        e(f"v_xor_b32 v{U+3}, {k}, v{U+1}")
        e(f"v_lshl_add_u32 v{BR+k}, v{U+3}, 6, v{U+2}")
    for r in range(64):
        e(f"v_accvgpr_write_b32 a{r}, 0")
    e(f"v_and_b32 v{U+1}, 31, v{L}")
    e(f"v_lshlrev_b32 v{U+2}, 9, v{U+1}")
    e(f"v_lshl_add_u32 v{U+2}, v{U}, 4, v{U+2}")
    e("s_lshl_b32 s46, s37, 5")
    e("s_lshl_b32 s47, s40, 4")
    e("s_add_u32 s46, s46, s47")
    e("s_lshl_b32 s47, s58, 1")
    e("s_add_u32 s46, s46, s47")
    e("s_add_u32 s46, s46, s41")
    e("s_lshl_b32 s46, s46, 10")
    e(f"s_add_u32 s59, s46, {WS_S}")
    e("s_barrier")
    e("s_barrier")
    for s in range(2):
        for k in range(4):
            for h in range(2):
                e(f"ds_read_b64_tr_b16 v[{8+16*s+4*k+2*h}:{9+16*s+4*k+2*h}], v{BR+k} offset:{s*4096 + h*1024}")
    e("s_waitcnt vmcnt(0) lgkmcnt(0)")
    for s in range(2):
        for k in range(4):
            e(f"v_mfma_f32_32x32x16_bf16 a[{16*k}:{16*k+15}], v[{8+16*s+4*k}:{11+16*s+4*k}], v[{GBF+4*s}:{GBF+4*s+3}], a[{16*k}:{16*k+15}]")
    e("s_nop 7"); e("s_nop 7")
    e(f"v_cmp_gt_u32 vcc, 2, v{U+1}")
    e("s_and_saveexec_b64 s[50:51], vcc")
    for k in range(4):
        for q in range(4):
            e(f"buffer_store_dwordx4 a[{16*k+4*q}:{16*k+4*q+3}], v{U+2}, s[32:35], s59 offen offset:{k*128+q*32} sc0 sc1")
    e("s_mov_b64 exec, -1")
    nonce_issue()
    e("s_barrier")
    e("s_barrier")
    e("s_mov_b32 s52, 3000")
    g.lab("L_nonce")
    e("s_waitcnt vmcnt(0)")
    e(f"v_readfirstlane_b32 s54, v{PL}")
    e("s_cmp_lg_u32 s54, 0")
    e("s_cbranch_scc1 L_gotnonce")
    e("s_cmp_eq_u32 s52, 0")
    e("s_cbranch_scc1 L_noflag")
    e("s_sub_u32 s52, s52, 1")
    nonce_issue()
    e("s_branch L_nonce")
    g.lab("L_gotnonce")
    e("s_lshl_b32 s46, s36, 3")
    e("s_add_u32 s46, s46, s37")
    e("s_lshl_b32 s46, s46, 7")
    e(f"s_add_u32 s46, s46, {WS_F}")
    e(f"v_mov_b32 v{U}, s46")
    e("s_mov_b64 exec, 1")
    e(f"buffer_store_dword v{PL}, v{U}, s[32:35], 0 offen sc0 sc1")
    e("s_mov_b64 exec, -1")
    g.lab("L_noflag")

    def row_final(S1, S2, D):
        mean, var, t1 = S1, S2, D + 3
        e(f"v_mul_f32 v{mean}, 0x3a800000, v{mean}")
        e(f"v_mul_f32 v{var}, 0x3a800000, v{var}")
        e(f"v_fma_f32 v{var}, -v{mean}, v{mean}, v{var}")
        e(f"v_max_f32 v{var}, 0, v{var}")
        e(f"v_cvt_pk_bf16_f32 v{t1}, v{mean}, v{var}")
        e(f"v_lshlrev_b32 v{D}, 16, v{t1}")
        e(f"v_and_b32 v{var}, 0xffff0000, v{t1}")
        e(f"v_add_f32 v{var}, 0x3727c5ac, v{var}")
        e(f"v_cvt_pk_bf16_f32 v{t1}, v{var}, v{var}")
        e(f"v_lshlrev_b32 v{var}, 16, v{t1}")
        e(f"v_sqrt_f32 v{var}, v{var}")
        e("s_nop 0")
        e(f"v_cvt_pk_bf16_f32 v{t1}, v{var}, v{var}")
        e(f"v_lshlrev_b32 v{D+1}, 16, v{t1}")
        e(f"v_rcp_f32 v{D+2}, v{D+1}")
        e("s_nop 0")
    for j in range(3, 8):
        e("s_barrier")
    e("s_barrier")
    e("s_endpgm")

    g.lab("L_tail")
    e("s_mov_b32 s53, 1")
    e(f"s_mov_b32 s52, {0 if force_fb==1 else 40000}")
    def tick(name):
        e("s_cmp_eq_u32 s53, 0")
        e(f"s_cbranch_scc1 {name}")
        e("s_sub_u32 s53, s53, 1")
        e("s_barrier")
        g.lab(name)
    g.lab("L_poll")
    e("s_waitcnt vmcnt(0)")
    if force_fb == 2: tick("L_t0")
    e(f"v_readfirstlane_b32 s54, v{PN}")
    e("s_mov_b64 exec, s[50:51]")
    e(f"v_cmp_ne_u32 vcc, v{PN}, v{PL}")
    e("s_mov_b64 exec, -1")
    e("s_cmp_eq_u32 s54, 0")
    e("s_cbranch_scc1 L_retry")
    if force_fb != 1:
        e("s_cbranch_vccz L_gather")
    g.lab("L_retry")
    tick("L_t1")
    e("s_cmp_eq_u32 s52, 0")
    e("s_cbranch_scc1 L_fallback")
    e("s_sub_u32 s52, s52, 1")
    tail_poll_issue()
    e("s_branch L_poll")
    g.lab("L_gather")
    e(f"v_lshlrev_b32 v{U}, 4, v{L}")
    e("s_mov_b32 s46, s64")
    for j in range(16):
        if j % 4 == 0 and j: e("s_add_u32 s46, s46, 4096")
        e(f"buffer_load_dwordx4 v[{D0+4*j}:{D0+3+4*j}], v{U}, s[32:35], s46 offen offset:{(j%4)*1024} sc0 sc1")
    tick("L_t2")
    e("s_waitcnt vmcnt(0)")
    for r in range(4): e(f"v_add_f32 v{16+r}, v{D0+r}, v{D0+4+r}")
    for j in range(2, 16):
        for r in range(4): e(f"v_add_f32 v{16+r}, v{16+r}, v{D0+4*j+r}")
    e("s_cmp_lg_u32 s40, 0")
    e("s_cbranch_scc1 L_wr_s")
    row_final(16, 17, 8)
    row_final(18, 19, 12)
    g.lab("L_wr_row")
    e(f"v_lshlrev_b32 v{U+1}, 5, v{L}")
    e(f"v_add_u32 v{U+1}, {ROWP}, v{U+1}")
    e(f"ds_write_b128 v{U+1}, v[8:11]")
    e(f"ds_write_b128 v{U+1}, v[12:15] offset:16")
    e("s_branch L_tdone")
    g.lab("L_wr_s")
    e(f"v_lshrrev_b32 v{U+2}, 5, v{L}")
    e(f"v_and_b32 v{U+1}, 31, v{L}")
    e(f"v_lshlrev_b32 v{U+1}, 4, v{U+1}")
    e(f"v_lshl_add_u32 v{U+1}, v{U+2}, 10, v{U+1}")
    e("s_lshl_b32 s46, s41, 9")
    e(f"s_add_u32 s46, s46, {SARR}")
    e(f"v_add_u32 v{U+1}, s46, v{U+1}")
    e(f"ds_write_b128 v{U+1}, v[16:19]")
    g.lab("L_tdone")
    e("s_waitcnt lgkmcnt(0)")
    e("s_barrier")
    e("s_endpgm")

    g.lab("L_fallback")
    srd(24, 6, 2048); srd(28, 8, 2048)
    e("s_cmp_lg_u32 s40, 0")
    e("s_cbranch_scc1 L_fb_s")
    e("s_mov_b32 s55, 0x3f803f80")
    for a in range(2):
        e(f"v_lshlrev_b32 v{U}, 12, v{L}")
        e("s_lshl_b32 s46, s36, 18")
        e(f"s_add_u32 s46, s46, {a << 11}")
        e("v_mov_b32 v30, 0"); e("v_mov_b32 v31, 0")
        e("s_mov_b32 s52, 128")
        g.lab(f"L_fb1_{a}")
        e(f"buffer_load_dwordx4 v[24:27], v{U}, s[16:19], s46 offen")
        e("s_waitcnt vmcnt(0)")
        for r in range(4):
            e(f"v_dot2_f32_bf16 v30, v{24+r}, s55, v30")
            e(f"v_dot2_f32_bf16 v31, v{24+r}, v{24+r}, v31")
        e("s_add_u32 s46, s46, 16")
        e("s_sub_u32 s52, s52, 1")
        e("s_cmp_lg_u32 s52, 0")
        e(f"s_cbranch_scc1 L_fb1_{a}")
        e("s_nop 2")
        row_final(30, 31, 8 + 4*a)
    e("s_branch L_wr_row")
    g.lab("L_fb_s")
    e(f"v_cmp_lt_u32 vcc, 31, v{L}")
    e("s_mov_b64 s[50:51], vcc")
    e(f"v_and_b32 v{U}, 31, v{L}")
    e(f"v_lshlrev_b32 v{U}, 3, v{U}")
    e("s_lshl_b32 s46, s37, 8")
    e("s_lshl_b32 s47, s41, 20")
    e("s_add_u32 s46, s46, s47")
    e("s_lshl_b32 s47, s41, 10")
    e(f"v_mov_b32 v{U+1}, 0")
    for r in range(4): e(f"v_mov_b32 v{16+r}, 0")
    e("s_mov_b32 s52, 512")
    g.lab("L_fb2")
    e(f"buffer_load_dwordx2 v[24:25], v{U}, s[20:23], s46 offen")
    e(f"buffer_load_ushort v26, v{U+1}, s[24:27], s47 offen")
    e(f"buffer_load_ushort v27, v{U+1}, s[28:31], s47 offen")
    e("s_waitcnt vmcnt(0)")
    e("v_cndmask_b32 v26, v26, v27, s[50:51]")
    e("v_lshlrev_b32 v26, 16, v26")
    e("v_lshlrev_b32 v28, 16, v24"); e("v_and_b32 v29, 0xffff0000, v24")
    e("v_lshlrev_b32 v30, 16, v25"); e("v_and_b32 v31, 0xffff0000, v25")
    for r in range(4): e(f"v_fmac_f32 v{16+r}, v{28+r}, v26")
    e("s_add_u32 s46, s46, 2048")
    e("s_add_u32 s47, s47, 2")
    e("s_sub_u32 s52, s52, 1")
    e("s_cmp_lg_u32 s52, 0")
    e("s_cbranch_scc1 L_fb2")
    e("s_branch L_wr_s")
    g.lab("L_end")
    e("s_endpgm")

    out = HDR
    out += "; Override launch geometry by editing the next line.\n"
    out += f"; @launch grid=(256,1,1) block=(768,1,1) lds={LDS_BYTES}\n"
    out += '.amdgcn_target "amdgcn-amd-amdhsa--gfx950"\n.text\n'
    out += f".globl {NAME}\n.p2align 8\n.type {NAME},@function\n{NAME}:\n"
    out += "\n".join(x for x in g.l if x is not None and x.strip()) + "\n"
    out += f""".section .rodata,"a"
.p2align 6
.amdhsa_kernel {NAME}
  .amdhsa_next_free_vgpr {NV+NA}
  .amdhsa_next_free_sgpr 96
  .amdhsa_accum_offset {NV}
  .amdhsa_group_segment_fixed_size 0
  .amdhsa_kernarg_size 56
  .amdhsa_user_sgpr_count 2
  .amdhsa_user_sgpr_kernarg_segment_ptr 1
  .amdhsa_system_sgpr_workgroup_id_x 1
.end_amdhsa_kernel
"""
    return out

if __name__ == '__main__':
    kw = {}
    for a in sys.argv[2:]:
        k, v = a.split('='); kw[k] = int(v)
    open(sys.argv[1], 'w').write(gen(**kw))
```

```python
import sys

NAME = "standalone__layernorm_linear__sampling_kernel"
HDR = open('standalone__layernorm_linear__sampling.s.ref').read().split('; Override launch')[0]

A_BASE = 98304
LDS_BYTES = 163840
ROWP = A_BASE
SARR = A_BASE + 2048
PIVX = A_BASE + 8192
WS_S = 1 << 20
WS_F = (1 << 20) + (1 << 19)
WS_BYTES = 2 << 20

NV, NA = 104, 64
V_LANE, V_PIV, V_GOFF = 1, 2, 3
V_ARD, V_BRD, V_BRD2, V_G, V_RAW, V_VF, V_T, V_X, V_ACC = 4, 8, 12, 16, 20, 40, 48, 64, 72
A_BF = 32

class G:
    def __init__(self):
        self.l = []; self.nvm = 0
    def e(self, s): self.l.append("    " + s)
    def lab(self, s): self.l.append(s + ":")
    def c(self, s): self.l.append("    ; " + s)
    def vm(self, s):
        self.e(s); self.nvm += 1; return self.nvm
    def wait_vm(self, idx, extra=""):
        n = self.nvm - idx
        assert 0 <= n <= 63, n
        self.e(f"s_waitcnt vmcnt({n}){extra}")

def gen(stamps=0, force_fb=0, pk=1, early=0, ost=1, fl=0, fast=1, est=0, pr=0, sched=0, direct=0, wide=0, hf=0, alt=0, ao=0, ap=0, lp=0):
    g = G(); e = g.e
    nst = [0]
    def stamp():
        if stamps:
            e(f"s_{'memtime' if stamps==2 else 'memrealtime'} s[{80+2*nst[0]}:{81+2*nst[0]}]"); nst[0] += 1
    def srd(d, b, n):
        e(f"s_mov_b32 s{d}, s{b}")
        e(f"s_and_b32 s{d+1}, s{b+1}, 0xffff")
        e(f"s_mov_b32 s{d+2}, {n}")
        e(f"s_mov_b32 s{d+3}, 0x00020000")
    L = V_LANE; T = V_T
    e("s_cmp_ge_u32 s2, 256")
    e("s_cbranch_scc1 L_end")
    stamp()
    e("s_load_dwordx8 s[4:11], s[0:1], 0")
    e("s_load_dwordx4 s[12:15], s[0:1], 32")
    e("s_load_dwordx2 s[56:57], s[0:1], 48")
    e(f"v_lshrrev_b32 v{T}, 6, v0")
    e(f"v_and_b32 v{L}, 63, v0")
    e(f"v_readfirstlane_b32 s39, v{T}")
    if hf:
        e("s_nop 2")
        e("s_add_u32 s39, s39, 8")
        e("s_cmp_ge_u32 s39, 12")
        e("s_cselect_b32 s46, 12, 0")
        e("s_sub_u32 s39, s39, s46")
    e("s_and_b32 s46, s2, 7")
    e("s_lshr_b32 s47, s2, 3")
    e("s_lshr_b32 s38, s47, 3")
    e("s_lshl_b32 s36, s46, 2")
    e("s_add_u32 s36, s36, s38")
    e("s_and_b32 s37, s47, 7")
    e("s_lshl_b32 s58, s38, 1")
    e("s_add_u32 s58, s58, s37")
    e("s_and_b32 s48, s46, 1")
    e("s_add_u32 s58, s58, s48")
    e("s_and_b32 s58, s58, 7")
    e("s_lshr_b32 s42, s46, 1")
    e("s_cmp_ge_u32 s39, 8")
    e("s_cbranch_scc1 L_helpers")

    e("s_and_b32 s40, s39, 3")
    e("s_lshr_b32 s41, s39, 2")
    e("s_lshl_b32 s44, s39, 13")
    e(f"s_add_u32 s44, s44, {A_BASE}")
    e(f"v_bfe_u32 v{T+2}, v{L}, 2, 2")
    e(f"v_lshlrev_b32 v{T+2}, 5, v{T+2}")
    e(f"v_lshrrev_b32 v{T+1}, 5, v{L}")
    e(f"v_lshl_add_u32 v{T+2}, v{T+1}, 4, v{T+2}")
    e(f"v_and_b32 v{T+3}, 3, v{L}")
    e(f"v_lshl_add_u32 v{V_GOFF}, v{T+3}, 2, v{T+2}")
    e("s_lshl_b32 s45, s41, 10")
    e("s_waitcnt lgkmcnt(0)")
    srd(24, 6, 2048)
    GP = T + 8
    for c in range(8):
        e(f"s_add_u32 s46, s58, {c}")
        e("s_and_b32 s46, s46, 7")
        e("s_lshl_b32 s46, s46, 7")
        e("s_add_u32 s46, s46, s45")
        g.vm(f"buffer_load_dword v{GP+c}, v{V_GOFF}, s[24:27], s46 offen")
    def loadG(c):
        e(f"v_lshlrev_b32 v{V_G+2*(c&1)}, 16, v{GP+c}")
        e(f"v_and_b32 v{V_G+2*(c&1)+1}, 0xffff0000, v{GP+c}")
    srd(32, 12, 8388608)
    srd(28, 56, WS_BYTES)
    e(f"v_and_b32 v{T}, 31, v{L}")
    e(f"v_bfe_u32 v{T+2}, v{L}, 1, 3")
    e(f"v_xor_b32 v{T+2}, v{T+2}, v{T+1}")
    e(f"v_lshlrev_b32 v{T+3}, 7, v{T}")
    e(f"v_lshl_add_u32 v{T+3}, v{T+2}, 4, v{T+3}")
    e(f"v_add_u32 v{V_ARD}, s44, v{T+3}")
    for s in range(1, 4):
        e(f"v_xor_b32 v{V_ARD+s}, {32*s}, v{V_ARD}")
    e(f"v_bfe_u32 v{T+2}, v{L}, 2, 2")
    e(f"v_lshl_add_u32 v{T+3}, v{T+1}, 3, v{T+2}")
    e(f"v_lshlrev_b32 v{T+3}, 8, v{T+3}")
    e(f"v_bfe_u32 v{T+4}, v{L}, 4, 1")
    e(f"v_lshl_add_u32 v{T+3}, v{T+4}, 5, v{T+3}")
    e(f"v_and_b32 v{T+4}, 3, v{L}")
    e(f"v_lshl_add_u32 v{T+3}, v{T+4}, 3, v{T+3}")
    e("s_lshl_b32 s46, s41, 14")
    e(f"v_add_u32 v{T+3}, s46, v{T+3}")
    e("s_lshl_b32 s49, s41, 1")
    for k in range(4):
        e(f"s_xor_b32 s46, s49, {k}")
        e(f"v_xor_b32 v{T+4}, s46, v{T+2}")
        e(f"v_lshl_add_u32 v{V_BRD+k}, v{T+4}, 6, v{T+3}")
        e(f"v_add_u32 v{V_BRD2+k}, 0x10000, v{V_BRD+k}")
    for r in range(32):
        e(f"v_accvgpr_write_b32 a{r}, 0")
        e(f"v_mov_b32 v{V_ACC+r}, 0")
    e(f"v_lshlrev_b32 v{V_X}, 3, v{T}")
    e("s_lshl_b32 s46, s36, 14")
    e("s_lshl_b32 s47, s41, 3")
    e("s_add_u32 s47, s47, s58")
    e("s_lshl_b32 s47, s47, 10")
    e("s_add_u32 s46, s46, s47")
    e("s_lshl_b32 s47, s40, 8")
    e("s_add_u32 s59, s46, s47")
    e(f"v_mov_b32 v{T}, 0x3f803f80")
    for k in range(4):
        e(f"v_mov_b32 v{T+1+k}, 0")

    rs = lambda t: V_RAW + 4 * (t % 5)
    def readA1(t):
        c, s = t >> 2, t & 3
        e(f"ds_read_b128 v[{rs(t)}:{rs(t)+3}], v{V_ARD+s} offset:{(c&1)*4096}")

    e("s_barrier")
    stamp()
    for t in range(4): readA1(t)
    e("s_waitcnt lgkmcnt(0)")
    for r in range(16):
        e(f"v_dot2_f32_bf16 v{T+1+(r&1)}, v{V_RAW+r}, v{T}, v{T+1+(r&1)}")
        e(f"v_dot2_f32_bf16 v{T+3+(r&1)}, v{V_RAW+r}, v{V_RAW+r}, v{T+3+(r&1)}")
    e("s_waitcnt vmcnt(0)")
    loadG(0); loadG(1)
    e(f"v_add_f32 v{T+1}, v{T+1}, v{T+2}")
    e(f"v_add_f32 v{T+2}, v{T+3}, v{T+4}")
    e(f"v_mov_b32 v{T+3}, v{T+1}")
    e(f"v_mov_b32 v{T+4}, v{T+2}")
    e("s_nop 1")
    e(f"v_permlane32_swap_b32 v{T+3}, v{T+1}")
    e(f"v_permlane32_swap_b32 v{T+4}, v{T+2}")
    e("s_nop 1")
    e(f"v_add_f32 v{V_X+2}, v{T+1}, v{T+3}")
    e(f"v_add_f32 v{V_X+3}, v{T+2}, v{T+4}")
    e(f"v_mul_f32 v{V_PIV}, 0x3c800000, v{V_X+2}")
    e("s_mov_b32 exec_hi, 0")
    e(f"buffer_store_dwordx2 v[{V_X+2}:{V_X+3}], v{V_X}, s[28:31], s59 offen sc0 sc1")
    e("s_mov_b64 exec, -1")

    def norm_ops(t, nopiv=False):
        c, s = t >> 2, t & 3
        raw = rs(t)
        vf = V_VF + (t & 1) * 4
        glo = V_G + 2 * (c & 1)
        groups = []
        for pp in range(2):
            o = []
            ps = (2 * pp, 2 * pp + 1)
            for p in ps:
                t0 = T + 2 * p
                o.append(f"v_lshlrev_b32 v{t0}, 16, v{raw+p}")
                o.append(f"v_and_b32 v{t0+1}, 0xffff0000, v{raw+p}")
            for p in ps:
                t0 = T + 2 * p
                if nopiv: continue
                o.append(f"v_sub_f32 v{t0}, v{t0}, v{V_PIV}")
                o.append(f"v_sub_f32 v{t0+1}, v{t0+1}, v{V_PIV}")
            for p in ps:
                t0 = T + 2 * p
                o.append(f"v_mul_f32_dpp v{t0}, v{glo}, v{t0} row_newbcast:{4*s+p} row_mask:0xf bank_mask:0xf")
                o.append(f"v_mul_f32_dpp v{t0+1}, v{glo+1}, v{t0+1} row_newbcast:{4*s+p} row_mask:0xf bank_mask:0xf")
            for p in ps:
                t0 = T + 2 * p
                o.append(f"v_cvt_pk_bf16_f32 v{vf+p}, v{t0}, v{t0+1}")
            hl = len(o) // 2
            groups.append(o[:hl]); groups.append(o[hl:])
        return groups

    def readB(t):
        c, s = t >> 2, t & 3
        slot = c % 3
        buf = A_BF + (t & 1) * 16
        for k in range(4):
            for h in range(2):
                if slot < 2:
                    e(f"ds_read_b64_tr_b16 a[{buf+4*k+2*h}:{buf+4*k+2*h+1}], v{V_BRD+k} offset:{slot*32768 + s*4096 + h*1024}")
                else:
                    e(f"ds_read_b64_tr_b16 a[{buf+4*k+2*h}:{buf+4*k+2*h+1}], v{V_BRD2+k} offset:{s*4096 + h*1024}")

    def accreg(k):
        return f"v[{V_ACC+16*k}:{V_ACC+16*k+15}]" if k < 2 else f"a[{16*(k-2)}:{16*(k-2)+15}]"
    EA = 12
    def mainloop(nopiv):
        for t in range(-1, 32):
            g.c(f"---- step {t}")
            loadG_next = None
            if t == 7: e("s_waitcnt vmcnt(0) lgkmcnt(0)")
            elif t >= 0: e("s_waitcnt lgkmcnt(0)")
            if (t + 1) % 4 == 0 and t + 1 <= 31:
                j = (t + 1) // 4
                e("s_barrier")
                if 1 <= j <= 6: loadG_next = j + 1
            if t in (-1, 7, 15, 23) and not est: stamp()
            if pr and t == pr - 2:
                tg = "f" if nopiv else "s"
                e("s_cmp_lt_u32 s39, 4"); e(f"s_cbranch_scc1 L_np{tg}"); e("s_setprio 1"); g.lab(f"L_np{tg}")
            if alt and t + ao >= 0 and (t + ao) % alt == 0:
                tg = ("f" if nopiv else "s") + str(t + 1)
                e("s_setprio 0")
                e(f"s_cmp_eq_u32 s41, {(((t + ao) // alt) + ap) & 1}")
                e(f"s_cbranch_scc0 L_al{tg}")
                e("s_setprio 1")
                g.lab(f"L_al{tg}")
            groups = norm_ops(t + 1, nopiv) if t + 1 <= 31 else [[], [], [], []]
            buf = A_BF + (t & 1) * 16
            vf = V_VF + (t & 1) * 4
            def mfma(k):
                if t >= 0:
                    e(f"v_mfma_f32_32x32x16_bf16 {accreg(k)}, a[{buf+4*k}:{buf+4*k+3}], v[{vf}:{vf+3}], {accreg(k)}")
            ok = (2, 3, 0, 1) if t == 31 else (0, 1, 2, 3)
            mfma(ok[0])
            if t + 5 <= 31: readA1(t + 5)
            if t + 1 <= 31: readB(t + 1)
            allv = groups[0] + groups[1] + groups[2] + groups[3]
            if sched == 0:
                n3 = (len(allv) + 2) // 3
                parts = [allv[:n3], allv[n3:2*n3], allv[2*n3:], []]
            elif sched == 1:
                parts = groups
            elif sched == 2:
                n4 = len(allv) // 4
                parts = [allv[:n4-1], allv[n4-1:2*n4+1], allv[2*n4+1:], []]
            for o in parts[0]: e(o)
            mfma(ok[1])
            for o in parts[1]: e(o)
            mfma(ok[2])
            for o in parts[2]: e(o)
            mfma(ok[3])
            for o in parts[3]: e(o)
            if sched == 1 and t >= 0: e("s_nop 0")
            if t == 24:
                e(f"v_and_b32 v{T}, 31, v{L}")
                e(f"v_lshrrev_b32 v{T+1}, 5, v{L}")
                e("s_lshl_b32 s46, s40, 9")
                e(f"s_add_u32 s46, s46, {ROWP}")
                e(f"v_lshl_add_u32 v{EA+1}, v{T}, 4, s46")
                e("s_lshl_b32 s46, s40, 7")
                e(f"s_add_u32 s46, s46, {PIVX}")
                e(f"v_lshl_add_u32 v{EA}, v{T}, 2, s46")
                e("s_lshl_b32 s47, s41, 9")
                e(f"v_add_u32 v{EA+3}, s47, v{EA}")
                e(f"v_lshl_add_u32 v{EA}, v{T+1}, 9, v{EA}")
                e("s_lshl_b32 s46, s41, 8")
                e(f"s_add_u32 s46, s46, {SARR}")
                e(f"v_lshl_add_u32 v{EA+2}, v{T}, 2, s46")
                e(f"v_lshl_add_u32 v{EA+2}, v{T+1}, 9, v{EA+2}")
            if t == 28:
                e(f"ds_write_b32 v{EA+3}, v{V_PIV}")
            if loadG_next is not None: loadG(loadG_next)
            if t < 0: e("s_nop 1")


    if fast:
        e(f"v_mul_f32 v{T}, v{V_X+2}, v{V_X+2}")
        e(f"v_mul_f32 v{T+1}, 0x42000000, v{V_X+3}")
        e(f"v_cmp_nle_f32 vcc, v{T}, v{T+1}")
        e("s_cbranch_vccnz L_slowloop" if fast == 1 else "s_branch L_slowloop")
        e(f"v_mov_b32 v{V_PIV}, 0")
        n0 = nst[0]
        mainloop(True)
        e("s_branch L_epi")
        g.lab("L_slowloop")
        nst[0] = n0
        mainloop(False)
        g.lab("L_epi")
    else:
        mainloop(False)
    g.c("---- epilogue")
    stamp()
    e(f"v_lshlrev_b32 v{T+7}, 4, v{L}")
    e("s_lshl_b32 s46, s40, 13")
    e("s_lshl_b32 s47, s41, 16")
    e("s_add_u32 s46, s46, s47")
    e(f"v_add_u32 v{T+8}, s46, v{T+7}")
    e("s_xor_b32 s46, s46, 0x10000")
    e(f"v_add_u32 v{T+9}, s46, v{T+7}")
    e(f"v_and_b32 v{T+4}, 31, v{L}")
    e(f"v_lshrrev_b32 v{T+6}, 5, v{L}")
    e("s_nop 1")
    for q in range(8):
        e(f"ds_write_b128 v{T+8}, a[{4*q}:{3+4*q}] offset:{q*1024}")
    if not wide:
        e(f"v_and_b32 v{T+12}, 7, v{T+4}")
        e(f"v_xor_b32 v{T+12}, v{T+12}, v{T+6}")
        e(f"v_lshlrev_b32 v{T+12}, 4, v{T+12}")
        e(f"v_lshl_add_u32 v{T+12}, v{T+4}, 7, v{T+12}")
        e("s_add_u32 s46, s44, 4096")
        e(f"v_add_u32 v{T+12}, s46, v{T+12}")
        e(f"v_lshrrev_b32 v{T+13}, 3, v{L}")
        e(f"v_and_b32 v{T+14}, 7, v{L}")
        e(f"v_xor_b32 v{T+15}, v{T+14}, v{T+13}")
        e(f"v_lshlrev_b32 v{T+15}, 4, v{T+15}")
        e(f"v_lshl_add_u32 v{T+15}, v{T+13}, 7, v{T+15}")
        e(f"v_add_u32 v{T+15}, s46, v{T+15}")
        e(f"v_lshlrev_b32 v{T+14}, 4, v{T+14}")
        e(f"v_lshl_add_u32 v{T+13}, v{T+13}, 11, v{T+14}")
    else:
        e("s_lshl_b32 s46, s40, 13")
        e(f"s_add_u32 s46, s46, {A_BASE + 32768}")
        e(f"v_and_b32 v{T+12}, 7, v{T+4}")
        e(f"v_xor_b32 v{T+12}, v{T+12}, v{T+6}")
        e(f"v_lshlrev_b32 v{T+12}, 4, v{T+12}")
        e(f"v_lshl_add_u32 v{T+12}, v{T+4}, 8, v{T+12}")
        e("s_lshl_b32 s48, s41, 7")
        e("s_add_u32 s48, s48, s46")
        e(f"v_add_u32 v{T+12}, s48, v{T+12}")
        e(f"v_lshrrev_b32 v{T+13}, 4, v{L}")
        e(f"v_and_b32 v{T+14}, 15, v{L}")
        e(f"v_xor_b32 v{T+15}, v{T+14}, v{T+13}")
        e(f"v_lshlrev_b32 v{T+15}, 4, v{T+15}")
        e(f"v_lshl_add_u32 v{T+15}, v{T+13}, 8, v{T+15}")
        e("s_lshl_b32 s48, s41, 12")
        e("s_add_u32 s48, s48, s46")
        e(f"v_add_u32 v{T+15}, s48, v{T+15}")
        e(f"v_xor_b32 v{T+11}, 64, v{T+15}")
        e(f"v_lshlrev_b32 v{T+14}, 4, v{T+14}")
        e(f"v_lshl_add_u32 v{T+13}, v{T+13}, 11, v{T+14}")
    for z in range(1, 4):
        e(f"v_xor_b32 v{T+z}, {z*32}, v{T+12}")
    e(f"v_lshlrev_b32 v{T+10}, 11, v{T+4}")
    e(f"v_lshl_add_u32 v{T+10}, v{T+6}, 4, v{T+10}")
    e("s_lshl_b32 s47, s36, 18")
    e("s_lshl_b32 s48, s37, 8")
    e("s_add_u32 s47, s47, s48")
    e("s_lshl_b32 s48, s41, 15" if wide else "s_lshl_b32 s48, s41, 7")
    e("s_add_u32 s47, s47, s48")
    e("s_lshl_b32 s48, s40, 16")
    e("s_add_u32 s47, s47, s48")
    e("s_waitcnt lgkmcnt(0)")
    if est: stamp()
    e("s_barrier")
    if est: stamp()
    P = 16
    RP = V_X; SV = V_X + 4; CC = 3
    e(f"ds_read_b32 v{CC}, v{EA}")
    e(f"ds_read_b128 v[{RP}:{RP+3}], v{EA+1}")
    for k in range(2):
        e(f"ds_read_b32 v{SV+2*k}, v{EA+2} offset:{k*128}")
        e(f"ds_read_b32 v{SV+2*k+1}, v{EA+2} offset:{k*128+1024}")
    for q in range(8):
        e(f"ds_read_b128 v[{P+4*q}:{P+3+4*q}], v{T+9} offset:{q*1024}")
    e("s_waitcnt lgkmcnt(8)")
    e(f"v_sub_f32 v{CC}, v{CC}, v{RP}")
    e(f"v_mov_b32 v{RP+3}, v{RP+2}")
    e("s_nop 0")
    for k in range(2):
        e(f"v_mfma_f32_32x32x2_f32 {accreg(k)}, v{SV+2*k+1}, v{RP+1}, {accreg(k)}")
        e(f"v_mfma_f32_32x32x2_f32 {accreg(k)}, v{SV+2*k}, v{CC}, {accreg(k)}")
    e("s_nop 15")
    e("s_nop 2")
    e("s_waitcnt lgkmcnt(0)")
    if est: stamp()
    O = 4
    for k in range(2):
        for q in range(4):
            r0 = V_ACC + 16*k + 4*q
            p0 = P + 16*k + 4*q
            if pk:
                for j in (0, 2):
                    e(f"v_pk_add_f32 v[{p0+j}:{p0+j+1}], v[{p0+j}:{p0+j+1}], v[{r0+j}:{r0+j+1}]")
                for j in (0, 2):
                    e(f"v_pk_mul_f32 v[{p0+j}:{p0+j+1}], v[{p0+j}:{p0+j+1}], v[{RP+2}:{RP+3}]")
            else:
                for j in range(4): e(f"v_add_f32 v{p0+j}, v{p0+j}, v{r0+j}")
                for j in range(4): e(f"v_mul_f32 v{p0+j}, v{p0+j}, v{RP+2}")
            oo = O + (q & 1) * 2 + (q >> 1) * 4
            e(f"v_cvt_pk_bf16_f32 v{oo}, v{p0}, v{p0+1}")
            e(f"v_cvt_pk_bf16_f32 v{oo+1}, v{p0+2}, v{p0+3}")
            if q & 1:
                o4 = O + (q >> 1) * 4
                z = 2*k + (q >> 1)
                e("s_nop 1")
                e(f"v_permlane32_swap_b32 v{o4}, v{o4+2}")
                e(f"v_permlane32_swap_b32 v{o4+1}, v{o4+3}")
                e("s_nop 1")
                if direct:
                    e(f"buffer_store_dwordx4 v[{o4}:{o4+3}], v{T+10}, s[32:35], s47 offen offset:{z*32} sc1")
                else:
                    e(f"ds_write_b128 v{T+12 if z == 0 else T+z}, v[{o4}:{o4+3}]")
    e("s_waitcnt lgkmcnt(0)")
    if est: stamp(); e("s_waitcnt lgkmcnt(0)")
    if wide: e("s_barrier")
    for it in range(4 if not direct else 0):
        e(f"ds_read_b128 v[{P+4*it}:{P+3+4*it}], v{T+11 if (wide and it & 1) else T+15} offset:{it*1024}")
    for it in range(4 if not direct else 0):
        e(f"s_waitcnt lgkmcnt({3-it})")
        if it: e(f"s_add_u32 s47, s47, {(4 if wide else 8)*2048}")
        e(f"buffer_store_dwordx4 v[{P+4*it}:{P+3+4*it}], v{T+13}, s[32:35], s47 offen" + ["", " sc1"][ost])
    if stamps:
        e("s_waitcnt vmcnt(0)")
        stamp()
        e("s_waitcnt lgkmcnt(0)")
        e("s_mov_b32 s30, 0x1000000")
        e("s_lshl_b32 s46, s2, 3")
        e("s_add_u32 s46, s46, s39")
        e("s_lshl_b32 s46, s46, 6")
        e("s_add_u32 s46, s46, 0x400000")
        e("v_mov_b32 v2, s46")
        for k in range(16):
            e(f"v_mov_b32 v{4+k}, s{80+k}")
        e(f"v_cmp_eq_u32 vcc, 0, v{L}")
        e("s_and_saveexec_b64 s[50:51], vcc")
        for k in range(4):
            e(f"buffer_store_dwordx4 v[{4+4*k}:{7+4*k}], v2, s[28:31], 0 offen offset:{16*k}")
        e("s_waitcnt vmcnt(0)")
    e("s_endpgm")

    g.lab("L_helpers")
    OA0, OA1, OB = 2, 3, 4
    e(f"v_lshrrev_b32 v{T}, 3, v{L}")
    e(f"v_lshlrev_b32 v{T}, 11, v{T}")
    e(f"v_and_b32 v{T+1}, 7, v{L}")
    e(f"v_lshrrev_b32 v{T+2}, 4, v{L}")
    e(f"v_xor_b32 v{T+1}, v{T+1}, v{T+2}")
    e(f"v_lshl_add_u32 v{OA0}, v{T+1}, 4, v{T}")
    e(f"v_xor_b32 v{OA1}, 64, v{OA0}")
    e(f"v_lshlrev_b32 v{T}, 11, v{T+2}")
    e(f"v_and_b32 v{T+1}, 15, v{L}")
    e(f"v_lshlrev_b32 v{T+3}, 2, v{T+2}")
    e(f"v_xor_b32 v{T+1}, v{T+1}, v{T+3}")
    e(f"v_lshl_add_u32 v{OB}, v{T+1}, 4, v{T}")
    e("s_lshl_b32 s43, s36, 18")
    e("s_lshl_b32 s45, s37, 8")
    e("s_waitcnt lgkmcnt(0)")
    srd(16, 4, 8388608)
    srd(20, 10, 2097152)
    e("s_cmp_eq_u32 s39, 11")
    e("s_cbranch_scc1 L_aux")
    if lp: e(f"s_setprio {lp}")
    e("s_cmp_eq_u32 s39, 10")
    e("s_cbranch_scc1 L_load2")
    e("s_sub_u32 s40, s39, 8")
    e("s_lshl_b32 s46, s40, 10")
    e("s_add_u32 s43, s43, s46")
    e("s_lshl_b32 s46, s40, 20")
    e("s_add_u32 s45, s45, s46")
    e("s_lshl_b32 s44, s40, 15")
    e(f"s_add_u32 s44, s44, {A_BASE}")
    e("s_lshl_b32 s49, s40, 14")

    def loader(kind):
        g.nvm = 0
        ids = {}
        def dmaA(c):
            if kind != 0: return
            e(f"s_add_u32 s47, s58, {c}")
            e("s_and_b32 s47, s47, 7")
            e("s_lshl_b32 s47, s47, 7")
            e("s_add_u32 s47, s47, s43")
            for i in range(4):
                for q in range(4):
                    e(f"s_add_u32 m0, s44, {i*8192 + (c&1)*4096 + q*1024}")
                    e(f"s_add_u32 s46, s47, {(32*i + 8*q)*2048}")
                    ids[('A', c)] = g.vm(f"buffer_load_dwordx4 v{OA0 if q%2==0 else OA1}, s[16:19], s46 offen lds")
        def dmaB(c):
            e(f"s_add_u32 s47, s58, {c}")
            e("s_and_b32 s47, s47, 7")
            e("s_lshl_b32 s47, s47, 17")
            e("s_add_u32 s47, s47, s45")
            if kind == 0:
                for q in range(8):
                    e(f"s_add_u32 m0, s49, {(c%3)*32768 + q*1024}")
                    e(f"s_add_u32 s46, s47, {(4*q)*2048}")
                    ids[('B', c)] = g.vm(f"buffer_load_dwordx4 v{OB}, s[20:23], s46 offen lds")
            else:
                for h in range(2):
                    for q in range(8, 16):
                        e(f"s_mov_b32 m0, {(c%3)*32768 + h*16384 + q*1024}")
                        e(f"s_add_u32 s46, s47, {(h*512 + 4*q)*2048}")
                        ids[('B', c)] = g.vm(f"buffer_load_dwordx4 v{OB}, s[20:23], s46 offen lds")
        def need(*keys):
            ks = [ids[k] for k in keys if k in ids]
            if ks: g.wait_vm(max(ks))
        dmaA(0); dmaB(0)
        if early == 1: dmaA(1); dmaB(1); dmaB(2)
        if early == 2: dmaA(1)
        need(('A', 0))
        e("s_barrier")
        if not early: dmaA(1); dmaB(1); dmaB(2)
        if early == 2: dmaB(1); dmaB(2)
        need(('B', 0), ('A', 1))
        e("s_barrier")
        dmaA(2)
        need(('B', 1), ('A', 2))
        e("s_barrier")
        dmaA(3); dmaB(3)
        need(('B', 2), ('A', 3))
        e("s_barrier")
        for j in range(2, 6):
            dmaA(j + 2); dmaB(j + 2)
            if j == 5:
                tail_setup()
                tail_poll_issue(); g.nvm += 2
            need(('B', j + 1), ('A', j + 2))
            e("s_barrier")
        e("s_branch L_tail")
    PA, PL, PN, U, D0 = 5, 6, 7, 92, 24
    def tail_setup():
        srd(32, 56, WS_BYTES)
        srd(60, 14, 256)
        e("s_sub_u32 s40, s39, 8")
        e("s_lshl_b32 s46, s36, 3")
        e(f"v_add_u32 v{PA}, s46, v{L}")
        e("s_mov_b64 s[50:51], 0xff")
        e("s_lshl_b32 s64, s36, 14")
        e("s_cmp_eq_u32 s40, 0")
        lbl = f"L_ts{len(g.l)}"
        e(f"s_cbranch_scc1 {lbl}")
        e("s_sub_u32 s41, s40, 1")
        e("s_lshl_b32 s46, s41, 4")
        e(f"v_add_u32 v{PA}, s46, v{L}")
        e(f"v_lshl_add_u32 v{PA}, v{PA}, 3, s37")
        e("s_mov_b64 s[50:51], 0xffff")
        e("s_lshl_b32 s64, s37, 15")
        e("s_lshl_b32 s46, s41, 14")
        e("s_add_u32 s64, s64, s46")
        e(f"s_add_u32 s64, s64, {WS_S}")
        g.lab(lbl)
        e(f"v_lshlrev_b32 v{PA}, 7, v{PA}")
        e(f"v_add_u32 v{PA}, {WS_F}, v{PA}")
        e(f"v_mov_b32 v{U+3}, 0")
    def tail_poll_issue():
        e(f"buffer_load_dword v{PN}, v{U+3}, s[60:63], 0 offen sc0 sc1")
        e("s_mov_b64 exec, s[50:51]")
        e(f"buffer_load_dword v{PL}, v{PA}, s[32:35], 0 offen sc0 sc1")
        e("s_mov_b64 exec, -1")
    loader(0)
    g.lab("L_load2")
    loader(1)

    g.lab("L_aux")
    g.nvm = 0
    PA, PL = 5, 6
    U = 92
    GBF = 96
    srd(24, 6, 2048); srd(28, 8, 2048)
    e("s_lshr_b32 s40, s42, 1")
    e("s_and_b32 s41, s42, 1")
    e(f"v_lshrrev_b32 v{U}, 5, v{L}")
    e(f"v_lshlrev_b32 v{T}, 4, v{U}")
    e("s_lshl_b32 s46, s40, 10")
    e("s_lshl_b32 s47, s58, 7")
    e("s_add_u32 s46, s46, s47")
    e("s_lshl_b32 s47, s41, 6")
    e("s_add_u32 s47, s46, s47")
    e("s_mov_b32 s50, 0x55555555")
    e("s_mov_b32 s51, 0x55555555")
    e("s_mov_b64 exec, s[50:51]")
    for s in range(2):
        e(f"buffer_load_dwordx4 v[{GBF+4*s}:{GBF+4*s+3}], v{T}, s[24:27], s47 offen offset:{32*s}")
    e("s_not_b64 exec, exec")
    for s in range(2):
        e(f"buffer_load_dwordx4 v[{GBF+4*s}:{GBF+4*s+3}], v{T}, s[28:31], s47 offen offset:{32*s}")
    e("s_mov_b64 exec, -1")
    srd(32, 56, WS_BYTES)
    srd(60, 14, 256)
    e("v_mov_b32 v7, 0")
    e("s_cmp_lg_u32 s2, 0")
    e("s_cbranch_scc1 L_nononce")
    e("s_memrealtime s[54:55]")
    e("s_waitcnt lgkmcnt(0)")
    e("s_or_b32 s54, s54, 1")
    e(f"v_mov_b32 v{PL}, s54")
    e("s_mov_b64 exec, 1")
    e(f"buffer_store_dword v{PL}, v7, s[60:63], 0 offen sc0 sc1")
    e("s_mov_b64 exec, -1")
    g.lab("L_nononce")
    def nonce_issue():
        e(f"buffer_load_dword v{PL}, v7, s[60:63], 0 offen sc0 sc1")
    BR = 72
    e(f"v_bfe_u32 v{U+1}, v{L}, 2, 2")
    e(f"v_lshl_add_u32 v{U+2}, v{U}, 3, v{U+1}")
    e(f"v_lshlrev_b32 v{U+2}, 8, v{U+2}")
    e(f"v_bfe_u32 v{U+3}, v{L}, 4, 1")
    e(f"v_lshl_add_u32 v{U+2}, v{U+3}, 5, v{U+2}")
    e(f"v_and_b32 v{U+3}, 3, v{L}")
    e(f"v_lshl_add_u32 v{U+2}, v{U+3}, 3, v{U+2}")
    e("s_lshl_b32 s46, s40, 14")
    e("s_lshl_b32 s47, s41, 13")
    e("s_add_u32 s46, s46, s47")
    e(f"v_add_u32 v{U+2}, s46, v{U+2}")
    for k in range(4):
        e(f"v_xor_b32 v{U+3}, {k}, v{U+1}")
        e(f"v_lshl_add_u32 v{BR+k}, v{U+3}, 6, v{U+2}")
    for r in range(64):
        e(f"v_accvgpr_write_b32 a{r}, 0")
    e(f"v_and_b32 v{U+1}, 31, v{L}")
    e(f"v_lshlrev_b32 v{U+2}, 9, v{U+1}")
    e(f"v_lshl_add_u32 v{U+2}, v{U}, 4, v{U+2}")
    e("s_lshl_b32 s46, s37, 5")
    e("s_lshl_b32 s47, s40, 4")
    e("s_add_u32 s46, s46, s47")
    e("s_lshl_b32 s47, s58, 1")
    e("s_add_u32 s46, s46, s47")
    e("s_add_u32 s46, s46, s41")
    e("s_lshl_b32 s46, s46, 10")
    e(f"s_add_u32 s59, s46, {WS_S}")
    e("s_barrier")
    e("s_barrier")
    for s in range(2):
        for k in range(4):
            for h in range(2):
                e(f"ds_read_b64_tr_b16 v[{8+16*s+4*k+2*h}:{9+16*s+4*k+2*h}], v{BR+k} offset:{s*4096 + h*1024}")
    e("s_waitcnt vmcnt(0) lgkmcnt(0)")
    for s in range(2):
        for k in range(4):
            e(f"v_mfma_f32_32x32x16_bf16 a[{16*k}:{16*k+15}], v[{8+16*s+4*k}:{11+16*s+4*k}], v[{GBF+4*s}:{GBF+4*s+3}], a[{16*k}:{16*k+15}]")
    e("s_nop 7"); e("s_nop 7")
    e(f"v_cmp_gt_u32 vcc, 2, v{U+1}")
    e("s_and_saveexec_b64 s[50:51], vcc")
    for k in range(4):
        for q in range(4):
            e(f"buffer_store_dwordx4 a[{16*k+4*q}:{16*k+4*q+3}], v{U+2}, s[32:35], s59 offen offset:{k*128+q*32} sc0 sc1")
    e("s_mov_b64 exec, -1")
    nonce_issue()
    e("s_barrier")
    e("s_barrier")
    e("s_mov_b32 s52, 3000")
    g.lab("L_nonce")
    e("s_waitcnt vmcnt(0)")
    e(f"v_readfirstlane_b32 s54, v{PL}")
    e("s_cmp_lg_u32 s54, 0")
    e("s_cbranch_scc1 L_gotnonce")
    e("s_cmp_eq_u32 s52, 0")
    e("s_cbranch_scc1 L_noflag")
    e("s_sub_u32 s52, s52, 1")
    nonce_issue()
    e("s_branch L_nonce")
    g.lab("L_gotnonce")
    e("s_lshl_b32 s46, s36, 3")
    e("s_add_u32 s46, s46, s37")
    e("s_lshl_b32 s46, s46, 7")
    e(f"s_add_u32 s46, s46, {WS_F}")
    e(f"v_mov_b32 v{U}, s46")
    e("s_mov_b64 exec, 1")
    e(f"buffer_store_dword v{PL}, v{U}, s[32:35], 0 offen sc0 sc1")
    e("s_mov_b64 exec, -1")
    g.lab("L_noflag")

    def row_final(S1, S2, D):
        mean, var, t1 = S1, S2, D + 3
        e(f"v_mul_f32 v{mean}, 0x3a800000, v{mean}")
        e(f"v_mul_f32 v{var}, 0x3a800000, v{var}")
        e(f"v_fma_f32 v{var}, -v{mean}, v{mean}, v{var}")
        e(f"v_max_f32 v{var}, 0, v{var}")
        e(f"v_cvt_pk_bf16_f32 v{t1}, v{mean}, v{var}")
        e(f"v_lshlrev_b32 v{D}, 16, v{t1}")
        e(f"v_and_b32 v{var}, 0xffff0000, v{t1}")
        e(f"v_add_f32 v{var}, 0x3727c5ac, v{var}")
        e(f"v_cvt_pk_bf16_f32 v{t1}, v{var}, v{var}")
        e(f"v_lshlrev_b32 v{var}, 16, v{t1}")
        e(f"v_sqrt_f32 v{var}, v{var}")
        e("s_nop 0")
        e(f"v_cvt_pk_bf16_f32 v{t1}, v{var}, v{var}")
        e(f"v_lshlrev_b32 v{D+1}, 16, v{t1}")
        e(f"v_rcp_f32 v{D+2}, v{D+1}")
        e("s_nop 0")
    for j in range(3, 8):
        e("s_barrier")
    e("s_barrier")
    e("s_endpgm")

    g.lab("L_tail")
    e("s_mov_b32 s53, 1")
    e(f"s_mov_b32 s52, {0 if force_fb==1 else 5000}")
    def tick(name):
        e("s_cmp_eq_u32 s53, 0")
        e(f"s_cbranch_scc1 {name}")
        e("s_sub_u32 s53, s53, 1")
        e("s_barrier")
        g.lab(name)
    g.lab("L_poll")
    e("s_waitcnt vmcnt(0)")
    if force_fb == 2: tick("L_t0")
    e(f"v_readfirstlane_b32 s54, v{PN}")
    e("s_mov_b64 exec, s[50:51]")
    e(f"v_cmp_ne_u32 vcc, v{PN}, v{PL}")
    e("s_mov_b64 exec, -1")
    e("s_cmp_eq_u32 s54, 0")
    e("s_cbranch_scc1 L_retry")
    if force_fb != 1:
        e("s_cbranch_vccz L_gather")
    g.lab("L_retry")
    tick("L_t1")
    e("s_cmp_eq_u32 s52, 0")
    e("s_cbranch_scc1 L_fallback")
    e("s_sub_u32 s52, s52, 1")
    tail_poll_issue()
    e("s_branch L_poll")
    g.lab("L_gather")
    e(f"v_lshlrev_b32 v{U}, 4, v{L}")
    e("s_mov_b32 s46, s64")
    for j in range(16):
        if j % 4 == 0 and j: e("s_add_u32 s46, s46, 4096")
        e(f"buffer_load_dwordx4 v[{D0+4*j}:{D0+3+4*j}], v{U}, s[32:35], s46 offen offset:{(j%4)*1024} sc0 sc1")
    tick("L_t2")
    e("s_waitcnt vmcnt(0)")
    for r in range(4): e(f"v_add_f32 v{16+r}, v{D0+r}, v{D0+4+r}")
    for j in range(2, 16):
        for r in range(4): e(f"v_add_f32 v{16+r}, v{16+r}, v{D0+4*j+r}")
    e("s_cmp_lg_u32 s40, 0")
    e("s_cbranch_scc1 L_wr_s")
    row_final(16, 17, 8)
    row_final(18, 19, 12)
    g.lab("L_wr_row")
    e(f"v_lshlrev_b32 v{U+1}, 5, v{L}")
    e(f"v_add_u32 v{U+1}, {ROWP}, v{U+1}")
    e(f"ds_write_b128 v{U+1}, v[8:11]")
    e(f"ds_write_b128 v{U+1}, v[12:15] offset:16")
    e("s_branch L_tdone")
    g.lab("L_wr_s")
    e(f"v_lshrrev_b32 v{U+2}, 5, v{L}")
    e(f"v_and_b32 v{U+1}, 31, v{L}")
    e(f"v_lshlrev_b32 v{U+1}, 4, v{U+1}")
    e(f"v_lshl_add_u32 v{U+1}, v{U+2}, 10, v{U+1}")
    e("s_lshl_b32 s46, s41, 9")
    e(f"s_add_u32 s46, s46, {SARR}")
    e(f"v_add_u32 v{U+1}, s46, v{U+1}")
    e(f"ds_write_b128 v{U+1}, v[16:19]")
    g.lab("L_tdone")
    e("s_waitcnt lgkmcnt(0)")
    e("s_barrier")
    e("s_endpgm")

    g.lab("L_fallback")
    srd(24, 6, 2048); srd(28, 8, 2048)
    e("s_cmp_lg_u32 s40, 0")
    e("s_cbranch_scc1 L_fb_s")
    e("s_mov_b32 s55, 0x3f803f80")
    for a in range(2):
        e(f"v_lshlrev_b32 v{U}, 12, v{L}")
        e("s_lshl_b32 s46, s36, 18")
        e(f"s_add_u32 s46, s46, {a << 11}")
        e("v_mov_b32 v30, 0"); e("v_mov_b32 v31, 0")
        e("s_mov_b32 s52, 128")
        g.lab(f"L_fb1_{a}")
        e(f"buffer_load_dwordx4 v[24:27], v{U}, s[16:19], s46 offen")
        e("s_waitcnt vmcnt(0)")
        for r in range(4):
            e(f"v_dot2_f32_bf16 v30, v{24+r}, s55, v30")
            e(f"v_dot2_f32_bf16 v31, v{24+r}, v{24+r}, v31")
        e("s_add_u32 s46, s46, 16")
        e("s_sub_u32 s52, s52, 1")
        e("s_cmp_lg_u32 s52, 0")
        e(f"s_cbranch_scc1 L_fb1_{a}")
        e("s_nop 2")
        row_final(30, 31, 8 + 4*a)
    e("s_branch L_wr_row")
    g.lab("L_fb_s")
    e(f"v_cmp_lt_u32 vcc, 31, v{L}")
    e("s_mov_b64 s[50:51], vcc")
    e(f"v_and_b32 v{U}, 31, v{L}")
    e(f"v_lshlrev_b32 v{U}, 3, v{U}")
    e("s_lshl_b32 s46, s37, 8")
    e("s_lshl_b32 s47, s41, 20")
    e("s_add_u32 s46, s46, s47")
    e("s_lshl_b32 s47, s41, 10")
    e(f"v_mov_b32 v{U+1}, 0")
    for r in range(4): e(f"v_mov_b32 v{16+r}, 0")
    e("s_mov_b32 s52, 512")
    g.lab("L_fb2")
    e(f"buffer_load_dwordx2 v[24:25], v{U}, s[20:23], s46 offen")
    e(f"buffer_load_ushort v26, v{U+1}, s[24:27], s47 offen")
    e(f"buffer_load_ushort v27, v{U+1}, s[28:31], s47 offen")
    e("s_waitcnt vmcnt(0)")
    e("v_cndmask_b32 v26, v26, v27, s[50:51]")
    e("v_lshlrev_b32 v26, 16, v26")
    e("v_lshlrev_b32 v28, 16, v24"); e("v_and_b32 v29, 0xffff0000, v24")
    e("v_lshlrev_b32 v30, 16, v25"); e("v_and_b32 v31, 0xffff0000, v25")
    for r in range(4): e(f"v_fmac_f32 v{16+r}, v{28+r}, v26")
    e("s_add_u32 s46, s46, 2048")
    e("s_add_u32 s47, s47, 2")
    e("s_sub_u32 s52, s52, 1")
    e("s_cmp_lg_u32 s52, 0")
    e("s_cbranch_scc1 L_fb2")
    e("s_branch L_wr_s")
    g.lab("L_end")
    e("s_endpgm")

    out = HDR
    out += "; Override launch geometry by editing the next line.\n"
    out += f"; @launch grid=(256,1,1) block=(768,1,1) lds={LDS_BYTES}\n"
    out += '.amdgcn_target "amdgcn-amd-amdhsa--gfx950"\n.text\n'
    out += f".globl {NAME}\n.p2align 8\n.type {NAME},@function\n{NAME}:\n"
    out += "\n".join(x for x in g.l if x is not None and x.strip()) + "\n"
    out += f""".section .rodata,"a"
.p2align 6
.amdhsa_kernel {NAME}
  .amdhsa_next_free_vgpr {NV+NA}
  .amdhsa_next_free_sgpr 96
  .amdhsa_accum_offset {NV}
  .amdhsa_group_segment_fixed_size 0
  .amdhsa_kernarg_size 56
  .amdhsa_user_sgpr_count 2
  .amdhsa_user_sgpr_kernarg_segment_ptr 1
  .amdhsa_system_sgpr_workgroup_id_x 1
.end_amdhsa_kernel
"""
    return out

if __name__ == '__main__':
    kw = {}
    for a in sys.argv[2:]:
        k, v = a.split('='); kw[k] = int(v)
    open(sys.argv[1], 'w').write(gen(**kw))
```
